```python
import torch

def _softmax(x, axis=-1):
    return torch.softmax(x, dim=axis)
def _gelu(x):
    return torch.nn.functional.gelu(x, approximate="tanh")
def _silu(x):
    return torch.nn.functional.silu(x)
def _sigmoid(x):
    return torch.sigmoid(x)
def _layernorm(x, axis=-1, eps=1e-5):
    m = x.mean(dim=axis, keepdim=True)
    v = x.var(dim=axis, keepdim=True, unbiased=False)
    return (x - m) / torch.sqrt(v + eps)
def _scatter_add(tgt, idx, src, axis=0):
    return tgt.clone().index_add_(axis, idx, src)
def _segment_sum(src, seg, n):
    out = torch.zeros((n,) + src.shape[1:], dtype=src.dtype)
    return out.index_add_(0, seg, src)
def _pad(x, pw):
    flat = tuple(v for pair in reversed(pw) for v in pair)
    return torch.nn.functional.pad(x, flat)

kernel_name = 'standalone__mha_block_cached__near_ridge'

def setup_inputs():

    _w = (lambda a: (lambda t: t.to(torch.bfloat16) if t.is_floating_point() else t)(torch.as_tensor(a)))
    B, Sq, D = 8, 192, 576
    H, Sk, Dh = 32, 2048, 128
    return {
        "x": _w((lambda *s: torch.randn(*s, dtype=torch.bfloat16) * 0.8)(B, Sq, D)),
        "k_cache": _w((lambda *s: torch.randn(*s, dtype=torch.bfloat16) * 0.8)(B, H, Sk, Dh)),
        "v_cache": _w((lambda *s: torch.randn(*s, dtype=torch.bfloat16) * 0.05)(B, H, Sk, Dh)),
        "wq": _w((lambda *s: torch.randn(*s, dtype=torch.bfloat16) * 0.8)(D, H * Dh) * (D ** -0.5)),
        "wo": _w((lambda *s: torch.randn(*s, dtype=torch.bfloat16) * 0.05)(H * Dh, D) * ((H * Dh) ** -0.5)),
    }

def reference(x, k_cache, v_cache, wq, wo):
    B, Sq, D = x.shape
    H, Dh = 32, 128
    q = (lambda x, *d: x.permute(*d))((x @ wq).reshape(B, Sq, H, Dh), 0, 2, 1, 3)
    scores = torch.einsum("bhqd,bhkd->bhqk", q, k_cache) * (Dh ** -0.5)
    p = _softmax(scores, axis=-1)
    o = torch.einsum("bhqk,bhkd->bhqd", p, v_cache)
    return (lambda x, *d: x.permute(*d))(o, 0, 2, 1, 3).reshape(B, Sq, H * Dh) @ wo
```

```python
HEADER = """; Kernarg layout for this problem (64 bytes, ptrs only, base s[0:1]):
"""

class Asm:
    def __init__(self):
        self.lines = []
    def __call__(self, s=""):
        for l in s.split("\n"):
            self.lines.append(l)
    def label(self, name):
        self.lines.append(name + ":")
    def text(self):
        return "\n".join(self.lines) + "\n"

def kernel_desc(name, vgpr, sgpr, accum):
    return f""".amdhsa_kernel {name}
  .amdhsa_next_free_vgpr {vgpr}
  .amdhsa_next_free_sgpr {sgpr}
  .amdhsa_accum_offset {accum}
  .amdhsa_group_segment_fixed_size 0
  .amdhsa_kernarg_size 64
  .amdhsa_user_sgpr_count 2
  .amdhsa_user_sgpr_kernarg_segment_ptr 1
  .amdhsa_system_sgpr_workgroup_id_x 1
  .amdhsa_float_denorm_mode_32 3
.end_amdhsa_kernel
"""
```

```python
import sys, math, struct
from asmlib import *

def f2u(x): return struct.unpack("<I", struct.pack("<f", x))[0]
def v(b, n=1): return f"v{b}" if n == 1 else f"v[{b}:{b+n-1}]"
def a(b, n=1): return f"a{b}" if n == 1 else f"a[{b}:{b+n-1}]"
def s(b, n=1): return f"s{b}" if n == 1 else f"s[{b}:{b+n-1}]"

K1 = "attn_fused_kernel"
K2 = "outproj_kernel"

VQ = 0
VS = 96
VP = 128
VNM = 144
VT = 192
VSA, VSB = 200, 201
VL = 202
VKA = 205
VVA = 213
VKD = 217
VVD = 221
VKB = 222
VVB = 230
VX = 234
VL16 = 244
AO = 0
AK = 192
AV = 224

def Q(j, ks): return VQ + (j * 8 + ks) * 4
def S(p): return VS + 16 * p
def P(p): return VP + 8 * p
def NM(j): return VNM + 16 * j
def O(j, dt): return AO + (j * 4 + dt) * 16
def KF(ks): return AK + 4 * ks
def VF(dt, kst): return AV + (dt * 2 + kst) * 4

SK, SV, SX, SW, SO = 8, 12, 16, 20, 24
S_B, S_H, S_RG, S_KH = 34, 35, 36, 37
S_KOFF, S_VOFF, S_CNT, S_THR, S_CLAMP, S_M0B = 38, 39, 40, 41, 42, 43
S_T0, S_T1, S_T2, S_T3 = 44, 45, 46, 47
S_SC = 48
S_XM0, S_XM1, S_WM0, S_WM1, S_XSO, S_WSO = 50, 51, 52, 53, 54, 55
S_BLK0, S_BLK1 = 56, 57
S_STAMP = 60

THR = 4096.0
DMA_INC = 16384
SLOT = 32768
X0B, X1B = 65536, 131072
W0B, W1A, W1B = 114688, 90112, 155648
QXB = 114688
STAMP_OFF = 0x1fffc000

class Gen(Asm):
    def __init__(self, cfg):
        super().__init__()
        self.cfg = cfg
        self.uid = 0
    def stamp(self, i):
        if self.cfg.get("stamps"):
            self(f"  s_memrealtime {s(S_STAMP + 2*i, 2)}\n  s_waitcnt lgkmcnt(0)")
    def cstamp(self, i):
        if self.cfg.get("stamps"):
            self(f"  s_memtime {s(S_STAMP + 2*i, 2)}\n  s_waitcnt lgkmcnt(0)")

def interleave(g, mfmas, fixed, flow, lead=0):
    n = len(mfmas)
    fixed_cost = [sum(c for _, c in fixed.get(i, [])) for i in range(n)]
    total = sum(c for _, c in flow) + sum(fixed_cost)
    target = total / n
    k = 0
    cum = 0.0
    for i in range(n):
        g("  " + mfmas[i])
        for ins, c in fixed.get(i, []):
            g("  " + ins); cum += c
        lim = target * (i + 1) + lead
        while k < len(flow) and (cum + flow[k][1] * 0.5 <= lim or i == n - 1):
            g("  " + flow[k][0]); cum += flow[k][1]; k += 1

def softmax_flow(sp, pp):
    Sb, Pb = S(sp), P(pp)
    T = lambda i: VT + (i % 8)
    e = lambda i: (f"v_exp_f32 {v(T(i))}, {v(Sb+i)}", 8)
    c = lambda p: (f"v_cvt_pk_bf16_f32 {v(Pb+p)}, {v(T(2*p))}, {v(T(2*p+1))}", 4)
    L = [e(0), e(1), e(2), e(3)]
    L += [(f"v_add_f32 {v(VSA)}, {v(T(0))}, {v(T(1))}", 4), c(0), e(4), e(5)]
    L += [(f"v_add_f32 {v(VSB)}, {v(T(2))}, {v(T(3))}", 4), c(1), e(6), e(7)]
    for p in range(2, 8):
        L += [(f"v_add_f32 {v(VSA)}, {v(VSA)}, {v(T(2*p))}", 4), (f"v_add_f32 {v(VSB)}, {v(VSB)}, {v(T(2*p+1))}", 4), c(p)]
        if 2 * p + 4 < 16:
            L += [e(2 * p + 4), e(2 * p + 5)]
    L += [(f"v_add_f32 {v(VSA)}, {v(VSA)}, {v(VSB)}", 4)]
    return L

def rare_block(g, name, ret, j, sp, pp):
    Sb, Pb = S(sp), P(pp)
    t0, t1, dl, f = VX, VX + 1, VX + 2, VX + 3
    g.label(name)
    g(f"  v_max3_f32 {v(t0)}, {v(Sb)}, {v(Sb+1)}, {v(Sb+2)}")
    for i in range(3, 15, 2):
        g(f"  v_max3_f32 {v(t0)}, {v(t0)}, {v(Sb+i)}, {v(Sb+i+1)}")
    g(f"  v_max_f32 {v(t0)}, {v(t0)}, {v(Sb+15)}")
    g(f"  v_mov_b32 {v(t1)}, {v(t0)}")
    g("  s_nop 1")
    g(f"  v_permlane32_swap_b32 {v(t0)}, {v(t1)}")
    g("  s_nop 1")
    g(f"  v_max_f32 {v(t0)}, {v(t0)}, {v(t1)}")
    g(f"  v_max_f32 {v(dl)}, {s(S_CLAMP)}, {v(t0)}")
    g(f"  v_max_f32 {v(f)}, 0, {v(dl)}")
    g(f"  v_sub_f32 {v(f)}, 0, {v(f)}")
    g(f"  v_exp_f32 {v(f)}, {v(f)}")
    for i in range(16):
        g(f"  v_sub_f32 {v(NM(j)+i)}, {v(NM(j)+i)}, {v(dl)}")
    g(f"  v_mul_f32 {v(VL+j)}, {v(VL+j)}, {v(f)}")
    for base in range(0, 64, 8):
        for i in range(8):
            g(f"  v_accvgpr_read_b32 {v(VT+i)}, {a(O(j,0)+base+i)}")
        for i in range(8):
            g(f"  v_mul_f32 {v(VT+i)}, {v(VT+i)}, {v(f)}")
        for i in range(8):
            g(f"  v_accvgpr_write_b32 {a(O(j,0)+base+i)}, {v(VT+i)}")
    for half in range(2):
        for i in range(8):
            g(f"  v_sub_f32 {v(VT+i)}, {v(Sb+8*half+i)}, {v(dl)}")
        for i in range(8):
            g(f"  v_exp_f32 {v(VT+i)}, {v(VT+i)}")
        g("  s_nop 0")
        for i in range(4):
            g(f"  v_cvt_pk_bf16_f32 {v(Pb+4*half+i)}, {v(VT+2*i)}, {v(VT+2*i+1)}")
        if half == 0:
            g(f"  v_add_f32 {v(VSA)}, {v(VT)}, {v(VT+1)}")
            rng = range(2, 8)
        else:
            rng = range(8)
        for i in rng:
            g(f"  v_add_f32 {v(VSA)}, {v(VSA)}, {v(VT+i)}")
    g(f"  s_branch {ret}")

def dma_group(slot):
    L = []
    L.append((f"s_add_u32 m0, {s(S_M0B)}, {slot*SLOT}", 1))
    L.append(("s_nop 0", 1))
    for p in range(4):
        L.append((f"buffer_load_dwordx4 {v(VKD+p)}, {s(SK,4)}, {s(S_KOFF)} offen offset:{1024*p} nt lds", 8))
    L.append((f"s_add_u32 m0, {s(S_M0B)}, {slot*SLOT+16384}", 1))
    L.append((f"s_add_u32 {s(S_KOFF)}, {s(S_KOFF)}, {DMA_INC}", 1))
    for p in range(4):
        L.append((f"buffer_load_dwordx4 {v(VVD)}, {s(SV,4)}, {s(S_VOFF)} offen offset:{1024*p} nt lds", 8))
    L.append((f"s_add_u32 {s(S_VOFF)}, {s(S_VOFF)}, {DMA_INC}", 1))
    return L

def kread(ks, slot):
    base = (VKA if slot < 2 else VKB) + ks
    return f"ds_read_b128 {a(KF(ks),4)}, {v(base)} offset:{(slot&1)*SLOT}"
def vread(dt, kst, half, slot):
    base = (VVA if slot < 2 else VVB) + dt
    return f"ds_read_b64_tr_b16 {a(VF(dt,kst)+2*half,2)}, {v(base)} offset:{(slot&1)*SLOT + kst*4096 + half*2048}"

def qk_mfmas(j, sp):
    L = []
    for ks in range(8):
        c = v(NM(j), 16) if ks == 0 else v(S(sp), 16)
        L.append(f"v_mfma_f32_32x32x16_bf16 {v(S(sp),16)}, {a(KF(ks),4)}, {v(Q(j,ks),4)}, {c}")
    return L
def pv_mfmas(j, pp):
    L = []
    for dt in range(4):
        for kst in range(2):
            L.append(f"v_mfma_f32_32x32x16_bf16 {a(O(j,dt),16)}, {a(VF(dt,kst),4)}, {v(P(pp)+4*kst,4)}, {a(O(j,dt),16)}")
    return L

def stage(g, t, j, rares):
    u = 3 * t + j
    par = u & 1
    jn, jp = (j + 1) % 3, (j + 2) % 3
    slot = t & 3
    mf = qk_mfmas(jn, par ^ 1) + pv_mfmas(jp, par ^ 1)
    fixed = {}
    pre = []
    if j == 0:
        for m in range(8):
            dt, kst = m >> 1, m & 1
            fixed[8 + m] = [(vread(dt, kst, 0, slot), 4), (vread(dt, kst, 1, slot), 4)]
    elif j == 1:
        for ks in range(8):
            fixed[ks] = [(kread(ks, slot), 4)]
        fixed[7].append(("s_waitcnt lgkmcnt(8)", 1))
    elif j == 2:
        pre.append("s_waitcnt lgkmcnt(0)")
    dstage = g.cfg.get("dma_stage", 0)
    if j == dstage:
        D = dma_group((slot + 3) & 3)
        groups = [D[0:3], [D[3]], [D[4]], [D[5]], D[6:9], [D[9]], [D[10]], D[11:13]]
        for i, grp in enumerate(groups):
            fixed.setdefault(i, [])
            fixed[i] = fixed[i] + grp
    flow = softmax_flow(par, par)
    if g.cfg.get("nodma"):
        fixed = {k: [x for x in L if not x[0].startswith("buffer_load")] for k, L in fixed.items()}
    if g.cfg.get("nolds"):
        fixed = {k: [x for x in L if not x[0].startswith("ds_read")] for k, L in fixed.items()}
    if g.cfg.get("nosm"):
        flow = []
    if g.cfg.get("noexp"):
        flow = [(i.replace("v_exp_f32", "v_mov_b32"), 4) if i.startswith("v_exp") else (i, c) for i, c in flow]
    for ins in pre: g("  " + ins)
    interleave(g, mf, fixed, flow, lead=g.cfg.get("lead", 8))
    name = f"L_rare_{t}_{j}"; ret = f"L_ret_{t}_{j}"
    if g.cfg.get("nosm") or g.cfg.get("noexp") or g.cfg.get("nochk"):
        return
    g(f"  v_cmp_lt_f32 vcc, {s(S_THR)}, {v(VSA)}")
    g(f"  s_cbranch_vccnz {name}")
    g.label(ret)
    g(f"  v_add_f32 {v(VL+j)}, {v(VL+j)}, {v(VSA)}")
    rares.append((name, ret, j, par, par))

def qproj_variant(g, kh):
    BF = lambda ks, nt: 0 + (ks * 3 + nt) * 4
    AF = lambda ks, mti: 48 + (ks * 2 + mti) * 4
    ACC = lambda mti, nt: 96 + (mti * 3 + nt) * 16
    XA = lambda buf, ks: 80 + buf * 4 + ks
    WA = lambda which, mti: 88 + which * 2 + mti
    XD = lambda p: VX + p
    WD = lambda p: VX + 4 + p

    def staging(k):
        L = []
        buf = k & 1
        xm = S_XM0 if buf == 0 else S_XM1
        wm = S_WM0 if buf == 0 else S_WM1
        for grp in range(3):
            L.append((f"s_add_u32 m0, {s(xm)}, {grp*4096}", 1))
            L.append((f"s_add_u32 {s(S_T0)}, {s(S_XSO)}, {k*128 + grp*36864}", 1))
            for p in range(4):
                L.append((f"buffer_load_dwordx4 {v(XD(p))}, {s(SX,4)}, {s(S_T0)} offen offset:{1024*p} lds", 8))
        for grp in range(2):
            L.append((f"s_add_u32 m0, {s(wm)}, {grp*4096}", 1))
            L.append((f"s_add_u32 {s(S_T0)}, {s(S_WSO)}, {k*64*8192 + grp*131072}", 1))
            for p in range(4):
                L.append((f"buffer_load_dwordx4 {v(WD(p))}, {s(SW,4)}, {s(S_T0)} offen offset:{1024*p} lds", 8))
        return L
    quads = []
    for (srd, isK, goff, loff) in [(SK, True, 0, 3 * SLOT), (SK, True, 16384, 0), (SV, False, 0, 16384),
                                    (SK, True, 32768, SLOT), (SV, False, 16384, SLOT + 16384)]:
        for blk in (S_BLK0, S_BLK1):
            quads.append((srd, isK, goff, loff, blk))
    def quad(q):
        srd, isK, goff, loff, blk = q
        L = [(f"s_add_u32 m0, {s(blk)}, {loff}", 1), (f"s_add_u32 {s(S_T0)}, {s(blk)}, {goff}", 1)]
        for p in range(4):
            vo = VKD + p if isK else VVD
            L.append((f"buffer_load_dwordx4 {v(vo)}, {s(srd,4)}, {s(S_T0)} offen offset:{1024*p} nt lds", 8))
        return L
    qsched = g.cfg.get("qsched", [2, 1, 1, 1, 1, 1, 1, 1, 1])
    assert sum(qsched) == 10
    qi = 0
    if kh == 0:
        for ins, _ in staging(0) + staging(1): g("  " + ins)
    zl = [f"v_accvgpr_write_b32 {a(i)}, 0" for i in list(range(0, 192)) + list(range(224, 256))]
    zi = 0
    for k in range(9):
        buf = k & 1
        if kh == 0:
            g(f"  s_waitcnt vmcnt({20 if k < 8 else 0})")
        g("  s_barrier")
        def reads(ks):
            L = []
            for mti in range(2):
                if buf == 0: which, off = 0, ks * 4096
                else: which, off = (1, ks * 4096) if ks < 2 else (2, (ks - 2) * 4096)
                for half in range(2):
                    L.append(f"ds_read_b64_tr_b16 {v(AF(ks,mti)+2*half,2)}, {v(WA(which,mti))} offset:{off + half*1024}")
            for nt in range(3):
                L.append(f"ds_read_b128 {v(BF(ks,nt),4)}, {v(XA(buf,ks))} offset:{nt*4096}")
            return L
        def mfmas(ks):
            L = []
            for nt in range(3):
                for mti in range(2):
                    c = "0" if (k == 0 and ks == 0) else v(ACC(mti, nt), 16)
                    L.append(f"v_mfma_f32_32x32x16_bf16 {v(ACC(mti,nt),16)}, {v(AF(ks,mti),4)}, {v(BF(ks,nt),4)}, {c}")
            return L
        for ins in reads(0) + reads(1): g("  " + ins)
        g("  s_waitcnt lgkmcnt(7)")
        def withz(mf, extra):
            nonlocal zi
            n = len(mf)
            per = [[] for _ in range(n)]
            for idx, ins in enumerate(extra):
                per[min(n - 1, idx * n // max(1, len(extra)))].append(ins)
            for i in range(n):
                g("  " + mf[i])
                for ins in per[i]: g("  " + ins)
                if zi < len(zl):
                    g("  " + zl[zi]); zi += 1
        withz(mfmas(0), reads(2))
        g("  s_waitcnt lgkmcnt(7)")
        withz(mfmas(1), reads(3))
        g("  s_waitcnt lgkmcnt(0)")
        g("  s_barrier")
        extra = []
        if kh == 0:
            if k + 2 <= 8: extra = [i for i, _ in staging(k + 2)]
        else:
            for _ in range(qsched[k]):
                extra += [i for i, _ in quad(quads[qi])]; qi += 1
        if k == 8:
            extra += [i for i, _ in dma_group(2)]
        withz(mfmas(2) + mfmas(3), extra)
    while zi < len(zl):
        g("  " + zl[zi]); zi += 1
    g("  s_nop 7\n  s_nop 3")
    for mti in range(2):
        for nt in range(3):
            ac = ACC(mti, nt)
            for i in range(0, 16, 2):
                g(f"  v_pk_mul_f32 {v(ac+i,2)}, {v(ac+i,2)}, {s(S_SC,2)}")
    for mti in range(2):
        for nt in range(3):
            ac = ACC(mti, nt)
            for hf in range(2):
                q = Q(nt, 2 * (2 * kh + mti) + hf)
                for i in range(4):
                    g(f"  v_cvt_pk_bf16_f32 {v(q+i)}, {v(ac+8*hf+2*i)}, {v(ac+8*hf+2*i+1)}")
    for nt in range(3):
        for i in range(4):
            g(f"  ds_write_b128 {v(VX+8)}, {v(Q(nt, 4*kh+i),4)} offset:{(nt*4+i)*1024}")
    if kh == 1:
        g("  s_waitcnt vmcnt(40) lgkmcnt(0)")
    else:
        g("  s_waitcnt lgkmcnt(0)")
    g("  s_barrier")
    for nt in range(3):
        for i in range(4):
            g(f"  ds_read_b128 {v(Q(nt, 4*(1-kh)+i),4)}, {v(VX+9)} offset:{(nt*4+i)*1024}")

def epilogue_variant(g, kh):
    keep = [2 * kh, 2 * kh + 1]; send = [2 * (1 - kh), 2 * (1 - kh) + 1]
    for j in range(3):
        for di, dt in enumerate(send):
            for q in range(4):
                g(f"  ds_write_b128 {v(VX+8)}, {a(O(j,dt)+4*q,4)} offset:{((j*2+di)*4+q)*1024}")
    g("  s_waitcnt lgkmcnt(0)")
    g("  s_barrier")
    for j in range(3):
        for di in range(2):
            for q in range(4):
                g(f"  ds_read_b128 {v(((j*2+di)*4+q)*4,4)}, {v(VX+9)} offset:{((j*2+di)*4+q)*1024}")
    first = True
    for j in range(3):
        go, gp = 96 + 4 * j, 96 + 4 * j + 2
        for di, dt in enumerate(keep):
            pb = (j * 2 + di) * 16
            ob = 112 + (di * 16)
            for i in range(16):
                g(f"  v_accvgpr_read_b32 {v(ob+i)}, {a(O(j,dt)+i)}")
            rem = 24 - ((j * 2 + di) + 1) * 4
            g(f"  s_waitcnt lgkmcnt({min(rem,15)})")
            for i in range(0, 16, 2):
                g(f"  v_pk_mul_f32 {v(pb+i,2)}, {v(pb+i,2)}, {v(gp,2)}")
            for i in range(0, 16, 2):
                g(f"  v_pk_fma_f32 {v(pb+i,2)}, {v(ob+i,2)}, {v(go,2)}, {v(pb+i,2)}")
            for i in range(8):
                g(f"  v_cvt_pk_bf16_f32 {v(ob+i)}, {v(pb+2*i)}, {v(pb+2*i+1)}")
            for kst in range(2):
                off = j * 32 * 8 * 1024 + (dt * 2 + kst) * 1024
                g(f"  s_add_u32 {s(S_T0)}, {s(S_T2)}, {off}")
                g(f"  buffer_store_dwordx4 {v(ob+4*kst,4)}, {v(VL16)}, {s(SO,4)}, {s(S_T0)} offen")
                g("  s_nop 1")

def gen_k1(g):
    cfg = g.cfg
    g(f".globl {K1}\n.p2align 8\n.type {K1},@function\n{K1}:")
    g("  s_cmp_ge_u32 s2, 256\n  s_cbranch_scc1 L_k1_end")
    g("  s_load_dwordx4 s[4:7], s[0:1], 0\n  s_load_dwordx4 s[28:31], s[0:1], 16\n  s_load_dwordx2 s[32:33], s[0:1], 56")
    if cfg.get("stamps"): g(f"  s_memrealtime {s(S_STAMP,2)}")
    g("  v_lshrrev_b32 v1, 6, v0\n  v_and_b32 v2, 63, v0\n  s_nop 0\n  v_readfirstlane_b32 s3, v1")
    mm = cfg.get("map", 3)
    g("  s_and_b32 s44, s2, 7\n  s_lshr_b32 s45, s2, 3")
    if mm == 2:
        g(f"  s_mov_b32 {s(S_B)}, s44\n  s_mov_b32 {s(S_H)}, s45")
    elif mm == 1:
        g(f"  s_lshl_b32 s46, s44, 2\n  s_and_b32 s47, s45, 3\n  s_add_u32 {s(S_H)}, s46, s47\n  s_lshr_b32 {s(S_B)}, s45, 2")
    elif mm == 3:
        g(f"""  s_and_b32 s46, s44, 1
  s_lshl_b32 s46, s46, 2
  s_and_b32 s47, s45, 3
  s_add_u32 {s(S_B)}, s46, s47
  s_lshr_b32 s46, s44, 1
  s_lshl_b32 s46, s46, 3
  s_lshr_b32 s47, s45, 2
  s_add_u32 {s(S_H)}, s46, s47""")
    elif mm == 0:
        g(f"  s_lshr_b32 {s(S_B)}, s2, 5\n  s_and_b32 {s(S_H)}, s2, 31")
    g(f"""  s_and_b32 {s(S_RG)}, s3, 1
  s_lshr_b32 {s(S_KH)}, s3, 1
  s_lshl_b32 s44, {s(S_B)}, 5
  s_add_u32 s44, s44, {s(S_H)}
  s_lshl_b32 s44, s44, 19
  s_mul_i32 s45, {s(S_B)}, 221184
  s_lshl_b32 s46, {s(S_H)}, 8
  s_waitcnt lgkmcnt(0)
  s_add_u32 s8, s6, s44
  s_addc_u32 s9, s7, 0
  s_and_b32 s9, s9, 0xffff
  s_mov_b32 s10, 0x80000
  s_mov_b32 s11, 0x20000
  s_add_u32 s12, s28, s44
  s_addc_u32 s13, s29, 0
  s_and_b32 s13, s13, 0xffff
  s_mov_b32 s14, 0x80000
  s_mov_b32 s15, 0x20000
  s_add_u32 s16, s4, s45
  s_addc_u32 s17, s5, 0
  s_and_b32 s17, s17, 0xffff
  s_mov_b32 s18, 221184
  s_mov_b32 s19, 0x20000
  s_add_u32 s20, s30, s46
  s_addc_u32 s21, s31, 0
  s_and_b32 s21, s21, 0xffff
  s_sub_u32 s22, {576*8192}, s46
  s_mov_b32 s23, 0x20000
  s_mov_b32 s24, s32
  s_and_b32 s25, s33, 0xffff
  s_mov_b32 s26, {8*6*256*1024}
  s_mov_b32 s27, 0x20000""")
    g("""  v_lshrrev_b32 v3, 4, v2
  v_and_b32 v4, 15, v2
  v_and_b32 v5, 31, v2
  v_lshrrev_b32 v6, 5, v2""")
    for p in range(4):
        g(f"""  v_add_u32 v7, {4*p}, v3
  v_xor_b32 v7, v7, v4
  v_lshlrev_b32 v7, 4, v7
  v_lshl_add_u32 {v(VKD+p)}, v3, 8, v7""")
    g(f"""  v_lshlrev_b32 v7, 2, v3
  v_xor_b32 v7, v7, v4
  v_lshlrev_b32 v7, 4, v7
  v_lshl_add_u32 {v(VVD)}, v3, 8, v7""")
    g(f"""  s_lshl_b32 s44, {s(S_KH)}, 13
  v_and_b32 v8, 15, v5
  v_xor_b32 v8, v8, v6
  v_lshlrev_b32 v8, 4, v8
  v_lshl_add_u32 v8, v5, 8, v8
  v_add_u32 v8, s44, v8""")
    for ks in range(8):
        g(f"  v_xor_b32 {v(VKA+ks)}, {ks*32}, v8")
        g(f"  v_add_u32 {v(VKB+ks)}, 0x10000, {v(VKA+ks)}")
    g(f"""  v_lshrrev_b32 v9, 2, v4
  v_and_b32 v10, 3, v4
  v_and_b32 v11, 1, v3
  v_lshlrev_b32 v11, 1, v11
  v_lshrrev_b32 v12, 1, v10
  v_add_u32 v11, v11, v12
  v_lshlrev_b32 v12, 2, v9
  v_xor_b32 v11, v11, v12
  v_lshlrev_b32 v11, 4, v11
  v_and_b32 v12, 1, v10
  v_lshl_add_u32 v11, v12, 3, v11
  v_lshl_add_u32 v12, v6, 2, v9
  v_lshl_add_u32 v11, v12, 8, v11
  v_add_u32 v11, s44, v11
  v_add_u32 v11, 16384, v11""")
    for dt in range(4):
        g(f"  v_xor_b32 {v(VVA+dt)}, {dt*64}, v11")
        g(f"  v_add_u32 {v(VVB+dt)}, 0x10000, {v(VVA+dt)}")
    g(f"""  s_mul_i32 s44, {s(S_RG)}, {96*128}
  v_lshrrev_b32 v12, 1, v5
  v_and_b32 v12, 7, v12
  v_xor_b32 v12, v12, v6
  v_lshlrev_b32 v12, 4, v12
  v_lshl_add_u32 v12, v5, 7, v12
  v_add_u32 v12, s44, v12""")
    for ks in range(4):
        g(f"  v_xor_b32 v13, {ks*32}, v12")
        g(f"  v_add_u32 {v(80+ks)}, {X0B}, v13")
        g(f"  v_add_u32 {v(84+ks)}, {X1B}, v13")
    g(f"""  v_and_b32 v12, 1, v3
  v_lshlrev_b32 v12, 1, v12
  v_and_b32 v13, 1, v10
  v_add_u32 v12, v12, v13
  v_lshlrev_b32 v13, 2, v9
  v_xor_b32 v12, v12, v13
  v_lshlrev_b32 v12, 4, v12
  v_lshrrev_b32 v13, 1, v10
  v_lshl_add_u32 v12, v13, 3, v12
  v_lshl_add_u32 v13, v6, 3, v9
  v_lshl_add_u32 v12, v13, 8, v12
  s_lshl_b32 s44, {s(S_KH)}, 7
  v_xor_b32 v12, s44, v12""")
    for mti in range(2):
        g(f"  v_xor_b32 v13, {mti*64}, v12")
        g(f"  v_add_u32 {v(88+mti)}, {W0B}, v13")
        g(f"  v_add_u32 {v(90+mti)}, {W1A}, v13")
        g(f"  v_add_u32 {v(92+mti)}, {W1B}, v13")
    g("""  v_lshrrev_b32 v12, 3, v2
  v_and_b32 v13, 7, v2
  s_movk_i32 s44, 1152
  v_mul_lo_u32 v12, v12, s44""")
    for p in range(4):
        g(f"""  v_add_u32 v14, {4*(p&1)}, v3
  v_xor_b32 v14, v14, v13
  v_lshlrev_b32 v14, 4, v14
  v_add_u32 v14, v14, v12
  v_add_u32 {v(VX+p)}, {p*8*1152 - 1024*p}, v14""")
    g("""  v_lshlrev_b32 v12, 2, v3
  v_xor_b32 v12, v12, v4
  v_lshlrev_b32 v12, 4, v12
  v_lshl_add_u32 v12, v3, 13, v12""")
    for p in range(4):
        g(f"  v_add_u32 {v(VX+4+p)}, {p*4*8192 - 1024*p}, v12")
    g(f"""  v_lshlrev_b32 {v(VL16)}, 4, v2
  s_mul_i32 s44, s3, 12288
  s_add_u32 s44, s44, {QXB}
  v_add_u32 {v(VX+8)}, s44, {v(VL16)}
  s_xor_b32 s45, s3, 2
  s_mul_i32 s44, s45, 12288
  s_add_u32 s44, s44, {QXB}
  v_add_u32 {v(VX+9)}, s44, {v(VL16)}""")
    sc = f2u(math.log2(math.e) / math.sqrt(128.0))
    g(f"""  s_mov_b32 {s(S_SC)}, {hex(sc)}
  s_mov_b32 {s(S_SC+1)}, {hex(sc)}
  s_lshl_b32 {s(S_M0B)}, s3, 12
  s_add_u32 {s(S_KOFF)}, {s(S_M0B)}, {3*16384}
  s_add_u32 {s(S_VOFF)}, {s(S_M0B)}, {2*16384}
  s_mov_b32 {s(S_THR)}, 0xbf800000
  s_mov_b32 {s(S_CLAMP)}, 0xff800000
  s_mul_i32 s44, {s(S_RG)}, 12288
  s_add_u32 {s(S_XM0)}, s44, {X0B}
  s_add_u32 {s(S_XM1)}, s44, {X1B}
  s_lshl_b32 s44, {s(S_RG)}, 13
  s_add_u32 {s(S_WM0)}, s44, {W0B}
  s_lshl_b32 s44, {s(S_RG)}, 16
  s_add_u32 {s(S_WM1)}, s44, {W1A}
  s_mul_i32 {s(S_XSO)}, {s(S_RG)}, {96*1152}
  s_lshl_b32 {s(S_WSO)}, {s(S_RG)}, 18
  s_lshl_b32 {s(S_BLK0)}, {s(S_RG)}, 12
  s_add_u32 {s(S_BLK1)}, {s(S_BLK0)}, 8192
  s_cmp_eq_u32 {s(S_KH)}, 0
  s_cbranch_scc0 L_qp1""")
    qproj_variant(g, 0)
    g("  s_branch L_qp_done")
    g.label("L_qp1")
    qproj_variant(g, 1)
    g.label("L_qp_done")
    g.stamp(1)
    g.cstamp(5)
    for i in range(48): g(f"  v_mov_b32 {v(VNM+i)}, 0")
    for i in range(3): g(f"  v_mov_b32 {v(VL+i)}, 0")
    for i in range(8): g(f"  v_mov_b32 {v(P(1)+i)}, 0")
    for ks in range(8): g("  " + kread(ks, 3))
    g("  s_waitcnt lgkmcnt(0)")
    for m in qk_mfmas(0, 0): g("  " + m)
    g(f"  s_mov_b32 {s(S_CNT)}, 0")
    g.label("L_loop")
    rares = []
    for t in range(4):
        g("  s_waitcnt vmcnt(16)")
        g("  s_barrier")
        for j in range(3):
            stage(g, t, j, rares)
        if t == 0:
            g(f"  s_mov_b32 {s(S_THR)}, {hex(f2u(THR))}\n  s_mov_b32 {s(S_CLAMP)}, 0")
    g(f"  s_add_u32 {s(S_CNT)}, {s(S_CNT)}, 1\n  s_cmp_lt_u32 {s(S_CNT)}, 8\n  s_cbranch_scc1 L_loop")
    for m in pv_mfmas(2, 1): g("  " + m)
    g.stamp(2)
    g.cstamp(6)
    for j in range(3):
        g(f"  v_mov_b32 {v(VT+j)}, {v(VL+j)}")
    g("  s_nop 1")
    for j in range(3):
        g(f"  v_permlane32_swap_b32 {v(VL+j)}, {v(VT+j)}")
    g("  s_nop 1")
    for j in range(3):
        g(f"  v_add_f32 {v(VL+j)}, {v(VL+j)}, {v(VT+j)}")
    g(f"""  v_lshrrev_b32 {v(VX)}, 2, {v(VL16)}
  s_mul_i32 s44, s3, 1536
  s_add_u32 s44, s44, 131072
  v_add_u32 {v(VX+1)}, s44, {v(VX)}
  s_xor_b32 s45, s3, 2
  s_mul_i32 s44, s45, 1536
  s_add_u32 s44, s44, 131072
  v_add_u32 {v(VX+2)}, s44, {v(VX)}""")
    for j in range(3):
        g(f"  ds_write_b32 {v(VX+1)}, {v(NM(j))} offset:{j*512}")
        g(f"  ds_write_b32 {v(VX+1)}, {v(VL+j)} offset:{j*512+256}")
    g("  s_waitcnt vmcnt(0) lgkmcnt(0)\n  s_barrier")
    for j in range(3):
        g(f"  ds_read_b32 {v(VT+2*j)}, {v(VX+2)} offset:{j*512}")
        g(f"  ds_read_b32 {v(VT+2*j+1)}, {v(VX+2)} offset:{j*512+256}")
    g(f"""  s_mul_i32 s44, s3, 24576
  v_add_u32 {v(VX+8)}, s44, {v(VL16)}
  s_xor_b32 s45, s3, 2
  s_mul_i32 s44, s45, 24576
  v_add_u32 {v(VX+9)}, s44, {v(VL16)}
  s_mul_i32 s44, {s(S_RG)}, 3
  s_mul_i32 s45, {s(S_B)}, 6
  s_add_u32 s44, s44, s45
  s_lshl_b32 s44, s44, 5
  s_add_u32 s44, s44, {s(S_H)}
  s_lshl_b32 {s(S_T2)}, s44, 13
  s_waitcnt lgkmcnt(0)""")
    for j in range(3):
        nmo, nmp, lp = NM(j), VT + 2 * j, VT + 2 * j + 1
        t, fo, fp = VX + 3, VX + 4, VX + 5
        go, gp = 96 + 4 * j, 96 + 4 * j + 2
        g(f"""  v_min_f32 {v(t)}, {v(nmo)}, {v(nmp)}
  v_sub_f32 {v(fo)}, {v(t)}, {v(nmo)}
  v_sub_f32 {v(fp)}, {v(t)}, {v(nmp)}
  v_exp_f32 {v(fo)}, {v(fo)}
  v_exp_f32 {v(fp)}, {v(fp)}
  s_nop 0
  v_mul_f32 {v(t)}, {v(VL+j)}, {v(fo)}
  v_fma_f32 {v(t)}, {v(lp)}, {v(fp)}, {v(t)}
  v_rcp_f32 {v(t)}, {v(t)}
  s_nop 0
  v_mul_f32 {v(go)}, {v(fo)}, {v(t)}
  v_mul_f32 {v(gp)}, {v(fp)}, {v(t)}
  v_mov_b32 {v(go+1)}, {v(go)}
  v_mov_b32 {v(gp+1)}, {v(gp)}""")
    g(f"  s_cmp_eq_u32 {s(S_KH)}, 0\n  s_cbranch_scc0 L_ep1")
    epilogue_variant(g, 0)
    g("  s_branch L_ep_done")
    g.label("L_ep1")
    epilogue_variant(g, 1)
    g.label("L_ep_done")
    g("  s_waitcnt vmcnt(0)")
    if cfg.get("stamps"):
        g.stamp(7)
        g(f"""  s_add_u32 s30, s32, {hex(STAMP_OFF)}
  s_addc_u32 s31, s33, 0
  s_lshl_b32 s44, s2, 6
  s_add_u32 s30, s30, s44
  s_addc_u32 s31, s31, 0
  v_mov_b32 v24, 0
  s_cmp_eq_u32 s3, 0
  s_cbranch_scc0 L_k1_end
  v_cmp_eq_u32 vcc, 0, {v(VL16)}
  s_and_saveexec_b64 s[46:47], vcc
  s_cbranch_execz L_k1_end""")
        for i in (0, 1, 2, 5, 6, 7):
            g(f"  v_mov_b32 v20, {s(S_STAMP+2*i)}\n  v_mov_b32 v21, {s(S_STAMP+2*i+1)}\n  global_store_dwordx2 v24, v[20:21], s[30:31] offset:{8*i}\n  s_nop 1")
        g("  s_waitcnt vmcnt(0)")
    g.label("L_k1_end")
    g("  s_endpgm")
    for r in rares:
        rare_block(g, *r)

def gen_k2(g):
    cfg = g.cfg
    NPF = cfg.get("k2_depth", 12)
    g(f".globl {K2}\n.p2align 8\n.type {K2},@function\n{K2}:")
    g("  s_cmp_ge_u32 s2, 216\n  s_cbranch_scc1 L_k2_end")
    g("  s_load_dwordx4 s[4:7], s[0:1], 32\n  s_load_dwordx2 s[32:33], s[0:1], 56")
    if cfg.get("stamps"): g(f"  s_memrealtime {s(S_STAMP,2)}")
    g("""  v_lshrrev_b32 v1, 6, v0
  v_and_b32 v2, 63, v0
  s_nop 0
  v_readfirstlane_b32 s3, v1
  s_and_b32 s34, s2, 7                 ; b
  s_lshr_b32 s35, s2, 3                ; qp*9+nt
  s_mul_i32 s36, s35, 57
  s_lshr_b32 s36, s36, 9               ; qp
  s_mul_i32 s37, s36, 9
  s_sub_u32 s37, s35, s37              ; nt
  s_waitcnt lgkmcnt(0)""")
    g(f"""  s_lshl_b32 s44, s37, 7
  s_add_u32 s8, s4, s44
  s_addc_u32 s9, s5, 0
  s_and_b32 s9, s9, 0xffff
  s_sub_u32 s10, {4096*1152}, s44
  s_mov_b32 s11, 0x20000
  s_mov_b32 s12, s32
  s_and_b32 s13, s33, 0xffff
  s_mov_b32 s14, {8*6*256*1024}
  s_mov_b32 s15, 0x20000
  s_mov_b32 s16, s6
  s_and_b32 s17, s7, 0xffff
  s_mov_b32 s18, {8*192*1152}
  s_mov_b32 s19, 0x20000""")
    g("""  s_mul_i32 s44, s34, 6
  s_lshl_b32 s45, s36, 1
  s_add_u32 s44, s44, s45
  s_lshl_b32 s44, s44, 18
  s_lshl_b32 s45, s3, 16
  s_add_u32 s38, s44, s45
  s_add_u32 s39, s38, 0x40000""")
    g(f"  s_mul_i32 s40, s3, {1024*1152}")
    RING = 16
    g("  s_lshl_b32 s41, s3, 15")
    g("""  v_lshrrev_b32 v3, 4, v2
  v_and_b32 v4, 15, v2
  v_lshrrev_b32 v6, 5, v2
  v_lshlrev_b32 v10, 4, v2""")
    g("""  v_lshrrev_b32 v7, 3, v2
  v_and_b32 v8, 7, v2
  v_lshrrev_b32 v9, 1, v7
  v_and_b32 v9, 1, v9
  v_lshlrev_b32 v9, 2, v9
  v_xor_b32 v8, v8, v9
  v_lshlrev_b32 v8, 4, v8
  s_movk_i32 s44, 1152
  v_mul_lo_u32 v7, v7, s44
  v_add_u32 v11, v7, v8
  v_add_u32 v12, 8192, v11""")
    g("""  v_lshrrev_b32 v7, 2, v4             ; r
  v_and_b32 v8, 3, v4                  ; c
  v_and_b32 v9, 1, v3
  v_lshlrev_b32 v9, 1, v9
  v_lshrrev_b32 v13, 1, v8
  v_add_u32 v9, v9, v13
  v_lshrrev_b32 v13, 1, v7
  v_lshlrev_b32 v13, 2, v13
  v_xor_b32 v9, v9, v13
  v_lshlrev_b32 v9, 4, v9
  v_and_b32 v13, 1, v8
  v_lshl_add_u32 v9, v13, 3, v9
  v_lshl_add_u32 v13, v6, 2, v7
  v_lshl_add_u32 v9, v13, 7, v9
  v_add_u32 v14, s41, v9
  v_xor_b32 v15, 64, v14""")
    ACC = lambda mt, nt: 16 + (mt * 2 + nt) * 16
    NB = NPF + 1
    BF = lambda k, nt: 80 + ((k % NB) * 2 + nt) * 4
    AFB = 80 + NB * 8
    AF = lambda k, mt: AFB + ((k & 1) * 2 + mt) * 4
    assert AFB + 16 <= 256
    def issue(k):
        L = []
        L.append(f"s_add_u32 m0, s41, {(k % RING)*2048}")
        L.append(f"s_add_u32 s44, s40, {k*16*1152}")
        L.append(f"buffer_load_dwordx4 v11, s[8:11], s44 offen lds")
        L.append(f"buffer_load_dwordx4 v12, s[8:11], s44 offen offset:1024 lds")
        L.append(f"s_add_u32 s45, s38, {k*1024}")
        L.append(f"buffer_load_dwordx4 {v(BF(k,0),4)}, v10, s[12:15], s45 offen")
        L.append(f"s_add_u32 s45, s39, {k*1024}")
        L.append(f"buffer_load_dwordx4 {v(BF(k,1),4)}, v10, s[12:15], s45 offen")
        return L
    def areads(k):
        L = []
        for mt in range(2):
            for half in range(2):
                L.append(f"ds_read_b64_tr_b16 {v(AF(k,mt)+2*half,2)}, {v(14+mt)} offset:{(k%RING)*2048 + half*1024}")
        return L
    assert NPF + 1 <= RING
    for k in range(NPF):
        for ins in issue(k): g("  " + ins)
    g(f"  s_waitcnt vmcnt({4*(NPF-1)})")
    for ins in areads(0): g("  " + ins)
    for k in range(64):
        nxt = issue(k + NPF) if k + NPF < 64 else []
        outstanding_after = min(64, k + NPF + 1) - (k + 2)
        mf = []
        for mt in range(2):
            for nt in range(2):
                c = "0" if k == 0 else v(ACC(mt, nt), 16)
                mf.append(f"v_mfma_f32_32x32x16_bf16 {v(ACC(mt,nt),16)}, {v(AF(k,mt),4)}, {v(BF(k,nt),4)}, {c}")
        g("  s_waitcnt lgkmcnt(0)")
        g("  " + mf[0])
        for ins in nxt[:4]: g("  " + ins)
        g("  " + mf[1])
        for ins in nxt[4:]: g("  " + ins)
        if k + 1 < 64:
            g(f"  s_waitcnt vmcnt({4*max(0,outstanding_after)})")
            g("  " + mf[2])
            for ins in areads(k + 1): g("  " + ins)
            g("  " + mf[3])
        else:
            g("  " + mf[2]); g("  " + mf[3])
    g.stamp(2)
    PITCH = 272
    g("  s_nop 7\n  s_nop 3\n  s_barrier")
    g(f"""  v_and_b32 v5, 31, v2
  s_movk_i32 s44, {PITCH}
  v_mul_lo_u32 v7, v5, s44
  v_lshl_add_u32 v7, v6, 4, v7
  s_mul_i32 s45, s3, {64*PITCH}
  v_add_u32 v7, s45, v7""")
    for mt in range(2):
        for nt in range(2):
            for q in range(4):
                g(f"  ds_write_b128 v7, {v(ACC(mt,nt)+4*q,4)} offset:{nt*32*PITCH + mt*128 + q*32}")
    g("  s_waitcnt lgkmcnt(0)\n  s_barrier")
    g(f"""  v_lshrrev_b32 v7, 3, v0
  v_and_b32 v8, 7, v0
  v_mul_lo_u32 v9, v7, s44
  v_lshl_add_u32 v9, v8, 5, v9""")
    for i in range(2):
        for w in range(4):
            for hq in range(2):
                g(f"  ds_read_b128 {v(80 + ((i*4+w)*2+hq)*4, 4)}, v9 offset:{i*32*PITCH + w*64*PITCH + hq*16}")
    g(f"""  s_mul_i32 s45, s34, 192
  s_lshl_b32 s46, s36, 6
  s_add_u32 s45, s45, s46
  s_mul_i32 s45, s45, 1152
  s_lshl_b32 s46, s37, 7
  s_add_u32 s45, s45, s46
  s_movk_i32 s44, 1152
  v_mul_lo_u32 v7, v7, s44
  v_lshl_add_u32 v7, v8, 4, v7""")
    for i in range(2):
        g(f"  s_waitcnt lgkmcnt({8 if i == 0 else 0})")
        b0 = 80 + i * 32
        for w in range(1, 4):
            for e in range(0, 8, 2):
                g(f"  v_pk_add_f32 {v(b0+e,2)}, {v(b0+e,2)}, {v(b0+w*8+e,2)}")
        for e in range(4):
            g(f"  v_cvt_pk_bf16_f32 {v(b0+e)}, {v(b0+2*e)}, {v(b0+2*e+1)}")
        g(f"  s_add_u32 s46, s45, {i*32*1152}")
        g(f"  buffer_store_dwordx4 {v(b0,4)}, v7, s[16:19], s46 offen")
    g("  s_waitcnt vmcnt(0)")
    if cfg.get("stamps"):
        g.stamp(7)
        g(f"""  s_add_u32 s30, s32, {hex(STAMP_OFF - 0x4000)}
  s_addc_u32 s31, s33, 0
  s_lshl_b32 s44, s2, 6
  s_add_u32 s30, s30, s44
  s_addc_u32 s31, s31, 0
  v_mov_b32 v24, 0
  v_cmp_eq_u32 vcc, 0, v0
  s_and_saveexec_b64 s[46:47], vcc
  s_cbranch_execz L_k2_end""")
        for i in (0, 2, 7):
            g(f"  v_mov_b32 v20, {s(S_STAMP+2*i)}\n  v_mov_b32 v21, {s(S_STAMP+2*i+1)}\n  global_store_dwordx2 v24, v[20:21], s[30:31] offset:{8*i}\n  s_nop 1")
        g("  s_waitcnt vmcnt(0)")
    g.label("L_k2_end")
    g("  s_endpgm")

def generate(cfg):
    global DMA_INC
    DMA_INC = cfg.get("dma_inc", 16384)
    g = Gen(cfg)
    g(HEADER.rstrip())
    if cfg.get("only") != 2:
        g(f"; @launch kernel={K1} grid=(256,1,1) block=(256,1,1) lds=163840")
    if cfg.get("only") != 1:
        g(f"; @launch kernel={K2} grid=(216,1,1) block=(256,1,1) lds=131072")
    g('.amdgcn_target "amdgcn-amd-amdhsa--gfx950"\n.text')
    gen_k1(g)
    gen_k2(g)
    g('.section .rodata,"a"\n.p2align 6')
    g(kernel_desc(K1, 512, 96, 256))
    g(".p2align 6")
    g(kernel_desc(K2, 256, 96, 256))
    return g.text()

if __name__ == "__main__":
    import json
    out = sys.argv[1]
    cfg = json.loads(sys.argv[2]) if len(sys.argv) > 2 else {}
    open(out, "w").write(generate(cfg))
```

```python
import sys, math, struct
from asmlib import *

def f2u(x): return struct.unpack("<I", struct.pack("<f", x))[0]
def v(b, n=1): return f"v{b}" if n == 1 else f"v[{b}:{b+n-1}]"
def a(b, n=1): return f"a{b}" if n == 1 else f"a[{b}:{b+n-1}]"
def s(b, n=1): return f"s{b}" if n == 1 else f"s[{b}:{b+n-1}]"
MF = "v_mfma_f32_16x16x32_bf16"

K1 = "attn_fused_kernel"
K2 = "outproj_kernel"

VQ = 0
VS = 96
VP = 128
VNM = 144
VL = 168
VONE = 192
VKA = 196
VVA = 204
VKD = 220
VVD = 224
VL16 = 226
VX = 228
AO = 0
AK = 192
AV = 224

def Q(qt, ks): return VQ + (qt * 4 + ks) * 4
def S(p, kt=0, qi=0): return VS + 16 * p + (kt * 2 + qi) * 4
def P(p, qi=0): return VP + 8 * p + 4 * qi
def NM(qt): return VNM + 4 * qt
def L(qt): return VL + 4 * qt
def O(qt, dt): return AO + (qt * 8 + dt) * 4
def KF(kt, ks): return AK + (ks * 2 + kt) * 4
def VF(dt): return AV + 4 * dt

SK, SV, SX, SW, SO = 8, 12, 16, 20, 24
S_B, S_H, S_RG, S_KH = 34, 35, 36, 37
S_KOFF, S_VOFF, S_CNT, S_PASS, S_M0B = 38, 39, 40, 41, 43
S_T0, S_T1, S_T2, S_T3 = 44, 45, 46, 47
S_SC = 48
S_WM, S_XSO, S_WSO = 50, 54, 55
S_BLK0, S_BLK1 = 56, 57
S_STAMP = 60
SWO = 84
S_WOP = 58

SLOT = 32768
WB = 114688
STATS = 131072
FLAGS = 163840 - 64
STAMP_OFF = 0x1fffc000
LTHR = 2.0 ** 40

class Gen(Asm):
    def __init__(self, cfg):
        super().__init__()
        self.cfg = cfg
    def stamp(self, i):
        if self.cfg.get("stamps"):
            self(f"  s_memrealtime {s(S_STAMP + 2*i, 2)}\n  s_waitcnt lgkmcnt(0)")
    def cstamp(self, i):
        if self.cfg.get("stamps"):
            self(f"  s_memtime {s(S_STAMP + 2*i, 2)}\n  s_waitcnt lgkmcnt(0)")

class VM:
    def __init__(self): self.ops = []
    def issue(self, tag, n=1): self.ops += [tag] * n
    def wait_for(self, *tags):
        last = -1
        for i, t in enumerate(self.ops):
            if t in tags: last = i
        n = len(self.ops) - 1 - last
        return min(n, 63)

def spread(g, mfmas, extra, cap=2):
    n = len(mfmas)
    per = [[] for _ in range(n)]
    for idx, ins in enumerate(extra):
        per[min(n - 1, idx * n // max(1, len(extra)))].append(ins)
    for i in range(n):
        g("  " + mfmas[i])
        for ins in per[i]: g("  " + ins)

def dma_k(slot):
    L_ = [(f"s_add_u32 m0, {s(S_M0B)}, {slot*SLOT}", 4)]
    L_.append(("s_nop 0", 0))
    for p in range(4):
        L_.append((f"buffer_load_dwordx4 {v(VKD+p)}, {s(SK,4)}, {s(S_KOFF)} offen offset:{1024*p} nt lds", 4))
    L_.append((f"s_add_u32 {s(S_KOFF)}, {s(S_KOFF)}, 16384", 4))
    return L_
def dma_v(slot):
    L_ = [(f"s_add_u32 m0, {s(S_M0B)}, {slot*SLOT+16384}", 4)]
    L_.append(("s_nop 0", 0))
    for p in range(4):
        L_.append((f"buffer_load_dwordx4 {v(VVD+(p&1))}, {s(SV,4)}, {s(S_VOFF)} offen offset:{1024*p} nt lds", 4))
    L_.append((f"s_add_u32 {s(S_VOFF)}, {s(S_VOFF)}, 16384", 4))
    return L_

def kread(kt, ks, slot):
    base = VKA + (0 if slot < 2 else 4) + ks
    return f"ds_read_b128 {a(KF(kt,ks),4)}, {v(base)} offset:{(slot&1)*SLOT + kt*4096}"
def vread(dt, half, slot):
    base = VVA + (0 if slot < 2 else 8) + dt
    return f"ds_read_b64_tr_b16 {a(VF(dt)+2*half,2)}, {v(base)} offset:{(slot&1)*SLOT + half*4096}"

def qk_mfmas(j, sp, czero=False):
    L_ = []
    for ks in range(4):
        for kt in range(2):
            for qi in range(2):
                d = S(sp, kt, qi)
                c = (("0" if czero else v(NM(2*j+qi), 4)) if ks == 0 else v(d, 4))
                L_.append(f"{MF} {v(d,4)}, {a(KF(kt,ks),4)}, {v(Q(2*j+qi,ks),4)}, {c}")
    return L_
def pv_mfmas(j, pp):
    L_ = []
    for dt in range(8):
        for qi in range(2):
            d = O(2*j+qi, dt)
            L_.append(f"{MF} {a(d,4)}, {a(VF(dt),4)}, {v(P(pp,qi),4)}, {a(d,4)}")
    for qi in range(2):
        d = L(2*j+qi)
        L_.append(f"{MF} {v(d,4)}, {v(VONE,4)}, {v(P(pp,qi),4)}, {v(d,4)}")
    return L_

def softmax_items(p):
    exps = []; cvts = []
    for qi in range(2):
        for kt in range(2):
            for h in range(2):
                r0 = S(p, kt, qi) + 2 * h
                exps.append(f"v_exp_f32 {v(r0)}, {v(r0)}")
                exps.append(f"v_exp_f32 {v(r0+1)}, {v(r0+1)}")
                cvts.append((f"v_cvt_pk_bf16_f32 {v(P(p,qi)+2*kt+h)}, {v(r0)}, {v(r0+1)}", len(exps)))
    return exps, cvts

def stage(g, t, j):
    cfg = g.cfg
    u = 3 * t + j
    par = u & 1
    jn, jp = (j + 1) % 3, (j + 2) % 3
    slot = t & 3
    mf = qk_mfmas(jn, par ^ 1) + pv_mfmas(jp, par ^ 1)
    n = len(mf)
    fixed = {i: [] for i in range(n)}
    pre = []
    dslot = (slot + 3) & 3
    kpos = cfg.get("kdma", (0, 0)); vpos = cfg.get("vdma", (1, 24))
    def place(L_, start):
        grp = [L_[0:3]] + [[x] for x in L_[3:]]
        for i, x in enumerate(grp):
            fixed[min(n - 1, start + i)] += x
    if j == 0:
        for dt in range(8):
            fixed[16 + 2 * dt + 1] += [(vread(dt, 0, slot), 4), (vread(dt, 1, slot), 4)]
    elif j == 1:
        fixed[15] += [("s_waitcnt lgkmcnt(0)", 4)]
        i = 16
        for ks in range(4):
            for kt in range(2):
                fixed[i] += [(kread(kt, ks, slot), 4)]; i += 1
    elif j == 2:
        pre.append("s_waitcnt lgkmcnt(0)")
    if j == kpos[0]: place(dma_k(dslot), kpos[1])
    if j == vpos[0]: place(dma_v(dslot), vpos[1])
    if cfg.get("nodma"):
        fixed = {k: [x for x in L_ if not x[0].startswith("buffer_load")] for k, L_ in fixed.items()}
    exps, cvts = softmax_items(par)
    if cfg.get("nosm"): exps, cvts = [], []
    for ins in pre: g("  " + ins)
    if j == 2 and cfg.get("trace"):
        g("  s_mov_b32 s79, m0\n  s_mov_b32 m0, s78\n  s_nop 0\n  v_writelane_b32 v250, s76, m0\n  v_writelane_b32 v251, s80, m0\n  s_mov_b32 m0, s79\n  s_nop 0")
    ei = ci = 0
    for i in range(n):
        g("  " + mf[i])
        free = 8
        last_was_exp = False
        for ins, c in fixed[i]:
            g("  " + ins); free -= c
        emitted_e_at_start = ei
        while True:
            if ei < len(exps) and free >= 8:
                g("  " + exps[ei]); ei += 1; free -= 8; last_was_exp = True
            elif ci < len(cvts) and free >= 4 and cvts[ci][1] <= emitted_e_at_start and (ei == len(exps) or free < 8):
                g("  " + cvts[ci][0]); ci += 1; free -= 4
            else:
                break
        if i == n - 1:
            if ei < len(exps) or ci < len(cvts):
                while ei < len(exps):
                    g("  " + exps[ei]); ei += 1
                g("  s_nop 0")
                while ci < len(cvts):
                    g("  " + cvts[ci][0]); ci += 1

def qproj_variant(g, role):
    cfg = g.cfg
    AF = lambda buf, mt: buf * 32 + mt * 4
    ACC = lambda mt, nt: 96 + (mt * 3 + nt) * 4
    XF = lambda st, nt: (st * 3 + nt) * 4
    WA = lambda ksp: VX + ksp
    WD = lambda p: VX + 4 + p
    XD = lambda nt: VX + 8 + nt
    TD = VX + 11
    vm = VM()
    def xload(k):
        L_ = []
        for st in (2 * k, 2 * k + 1):
            for nt in range(3):
                L_.append(f"buffer_load_dwordx4 {a(XF(st,nt),4)}, {v(XD(nt))}, {s(SX,4)}, {s(S_XSO)} offen offset:{st*64}")
        vm.issue(f"X{k}", 6)
        return L_
    def wload(k):
        L_ = []
        for grp in range(2):
            L_.append(f"s_add_u32 m0, {s(S_WM)}, {(k%3)*16384 + grp*4096}")
            L_.append(f"s_add_u32 {s(S_T0)}, {s(S_WSO)}, {k*64*8192 + grp*16*8192}")
            for p in range(4):
                L_.append(f"buffer_load_dwordx4 {v(WD(p))}, {s(SW,4)}, {s(S_T0)} offen offset:{1024*p} lds")
        vm.issue(f"W{k}", 8)
        return L_
    def touch():
        L_ = []
        nt_ = cfg.get("ntouch", 3)
        stride_rows = 128 // cfg.get("touch_per_row", 4)
        for i in range(nt_):
            L_.append(f"s_add_u32 {s(S_T0)}, {s(S_T3)}, {i*stride_rows*8192}")
            L_.append(f"buffer_load_dword {v(VX+12+i)}, {v(TD)}, {s(SW,4)}, {s(S_T0)} offen")
        vm.issue("T", nt_)
        return L_
    def quad(tag, srd, isK, goff, loff, blk):
        L_ = [f"s_add_u32 m0, {s(blk)}, {loff}", f"s_add_u32 {s(S_T0)}, {s(blk)}, {goff}"]
        for p in range(4):
            vo = VKD + p if isK else VVD + (p & 1)
            L_.append(f"buffer_load_dwordx4 {v(vo)}, {s(srd,4)}, {s(S_T0)} offen offset:{1024*p} nt lds")
        vm.issue(tag, 4)
        return L_
    def part(tag, srd, isK, goff, loff):
        return quad(tag, srd, isK, goff, loff, S_BLK0) + quad(tag, srd, isK, goff, loff, S_BLK1)
    plan = {}
    pro = []
    if role == 0:
        pro += wload(0) + xload(0) + wload(1) + xload(1) + touch() + wload(2) + xload(2) + xload(3) + xload(4)
        later = {}
        for k in range(6):
            later[(k, 1)] = (lambda k=k: wload(k + 3) + (xload(k + 5) if k + 5 <= 8 else []))
    else:
        for k in range(9): pro += xload(k)
        pro += part("K0", SK, True, 0, 3 * SLOT)
        later = {
            (0, 1): lambda: part("G0", SV, False, 0, 16384),
            (1, 0): lambda: part("G0", SK, True, 16384, 0),
            (1, 1): lambda: part("G1", SV, False, 16384, SLOT + 16384),
            (2, 0): lambda: part("G1", SK, True, 2 * 16384, SLOT),
            (2, 1): lambda: part("G2", SV, False, 2 * 16384, 2 * SLOT + 16384),
            (3, 0): lambda: part("G2", SK, True, 3 * 16384, 2 * SLOT),
        }
    for ins in pro: g("  " + ins)
    return_setup = cfg["_setup"]
    return_setup(g)
    def reads(k, step):
        L_ = []
        buf = step
        for mt in range(8):
            ksp, hf = mt >> 1, mt & 1
            for half in range(2):
                L_.append(f"ds_read_b64_tr_b16 {v(AF(buf,mt)+2*half,2)}, {v(WA(ksp))} offset:{(k%3)*16384 + step*8192 + half*1024 + hf*8}")
        return L_
    def mfmas(k, step):
        L_ = []
        st = 2 * k + step
        for mt in range(8):
            for nt in range(3):
                c = "0" if st == 0 else v(ACC(mt, nt), 4)
                L_.append(f"{MF} {v(ACC(mt,nt),4)}, {v(AF(step,mt),4)}, {a(XF(st,nt),4)}, {c}")
        return L_
    def zeros(k, step):
        if k == 0:
            return [f"v_accvgpr_write_b32 {a(AV + 16*step + i)}, 0" for i in range(16)]
        base = 24 * (k - 1) + 12 * step
        return [f"v_accvgpr_write_b32 {a(base+i)}, 0" for i in range(12)]
    need = ("W0", "X0") if role == 0 else ("X0",)
    g(f"  s_waitcnt vmcnt({vm.wait_for(*need)})")
    g("  s_barrier")
    g.stamp(3)
    for ins in reads(0, 0): g("  " + ins)
    for k in range(9):
        g("  s_waitcnt lgkmcnt(0)")
        ex = reads(k, 1)
        lat = later.get((k, 0))
        ex2 = (lat() if lat else []) + zeros(k, 0)
        spread(g, mfmas(k, 0), ex + ex2)
        g("  s_waitcnt lgkmcnt(0)")
        if k < 8:
            need = (f"W{k+1}", f"X{k+1}") if role == 0 else (f"X{k+1}",)
            g(f"  s_waitcnt vmcnt({vm.wait_for(*need)})")
        g("  s_barrier")
        ex = reads(k + 1, 0) if k < 8 else []
        lat = later.get((k, 1))
        ex2 = (lat() if lat else []) + zeros(k, 1)
        spread(g, mfmas(k, 1), ex + ex2)
    g("  s_nop 7")
    for mt in range(8):
        for nt in range(3):
            ac = ACC(mt, nt)
            for i in (0, 2):
                g(f"  v_pk_mul_f32 {v(ac+i,2)}, {v(ac+i,2)}, {s(S_SC,2)}")
    for nt in range(3):
        for ksp in range(4):
            q = (nt * 4 + ksp) * 4
            for hf in range(2):
                ac = ACC(2 * ksp + hf, nt)
                for i in range(2):
                    g(f"  v_cvt_pk_bf16_f32 {v(q+2*hf+i)}, {v(ac+2*i)}, {v(ac+2*i+1)}")
    for nt in range(3):
        for ksp in range(4):
            g(f"  ds_write_b128 {v(VX+16)}, {v((nt*4+ksp)*4,4)} offset:{(nt*4+ksp)*1024}")
    if role == 1:
        g(f"  s_waitcnt vmcnt({vm.wait_for('K0')}) lgkmcnt(0)")
    else:
        g("  s_waitcnt lgkmcnt(0)")
    g("  s_barrier")

def epilogue_variant(g, kh):
    keep = [4 * kh + i for i in range(4)]; send = [4 * (1 - kh) + i for i in range(4)]
    for qt in range(6):
        for di, dt in enumerate(send):
            g(f"  ds_write_b128 {v(VX+8)}, {a(O(qt,dt),4)} offset:{(qt*4+di)*1024}")
    g("  s_waitcnt lgkmcnt(0)")
    g("  s_barrier")
    for qt in range(6):
        for di in range(4):
            g(f"  ds_read_b128 {v((qt*4+di)*4,4)}, {v(VX+9)} offset:{(qt*4+di)*1024}")
    CH = VX + 10
    g(f"  v_mov_b32 {v(CH)}, 0\n  v_mov_b32 {v(CH+1)}, 0")
    for qt in range(6):
        go, gp = 96 + 4 * qt, 96 + 4 * qt + 2
        ob = 120 + (qt & 1) * 16
        for di, dt in enumerate(keep):
            for r in range(4):
                g(f"  v_accvgpr_read_b32 {v(ob+4*di+r)}, {a(O(qt,dt)+r)}")
        rem = 24 - (qt + 1) * 4
        g(f"  s_waitcnt lgkmcnt({min(rem,15)})")
        pb = qt * 16
        for i in range(0, 16, 2):
            g(f"  v_pk_mul_f32 {v(pb+i,2)}, {v(pb+i,2)}, {v(gp,2)}")
        for i in range(0, 16, 2):
            g(f"  v_pk_fma_f32 {v(pb+i,2)}, {v(ob+i,2)}, {v(go,2)}, {v(pb+i,2)}")
        for i in range(8):
            g(f"  v_cvt_pk_bf16_f32 {v(ob+i)}, {v(pb+2*i)}, {v(pb+2*i+1)}")
        for sidx in range(2):
            off = qt * 32 * 4 * 1024 + (2 * kh + sidx) * 1024
            g(f"  s_add_u32 {s(S_T0)}, {s(S_T2)}, {off}")
            g(f"  buffer_store_dwordx4 {v(ob+4*sidx,4)}, {v(VL16)}, {s(SO,4)}, {s(S_T0)} offen{g.cfg.get('ostore',' sc1')}")
        for i in range(0, 16, 2):
            g(f"  v_pk_add_f32 {v(CH,2)}, {v(CH,2)}, {v(pb+i,2)}")

def gen_k1(g):
    cfg = g.cfg
    g(f".globl {K1}\n.p2align 8\n.type {K1},@function\n{K1}:")
    g("  s_cmp_ge_u32 s2, 256\n  s_cbranch_scc1 L_k1_end")
    g(f"  s_load_dwordx4 s[4:7], s[0:1], 0\n  s_load_dwordx4 s[28:31], s[0:1], 16\n  s_load_dwordx2 s[32:33], s[0:1], 56\n  s_load_dwordx2 {s(S_WOP,2)}, s[0:1], 32")
    if cfg.get("stamps"): g(f"  s_memrealtime {s(S_STAMP,2)}")
    g(f"  v_lshrrev_b32 v1, 6, v0\n  s_mov_b32 {s(S_PASS)}, 0\n  v_readfirstlane_b32 s3, v1")
    mm = cfg.get("map", 3)
    g("  s_and_b32 s44, s2, 7\n  s_lshr_b32 s45, s2, 3")
    if mm == 2:
        g(f"  s_mov_b32 {s(S_B)}, s44\n  s_mov_b32 {s(S_H)}, s45")
    elif mm == 3:
        g(f"""  s_and_b32 s46, s44, 1
  s_lshl_b32 s46, s46, 2
  s_and_b32 s47, s45, 3
  s_add_u32 {s(S_B)}, s46, s47
  s_lshr_b32 s46, s44, 1
  s_lshl_b32 s46, s46, 3
  s_lshr_b32 s47, s45, 2
  s_add_u32 {s(S_H)}, s46, s47""")
    elif mm == 0:
        g(f"  s_lshr_b32 {s(S_B)}, s2, 5\n  s_and_b32 {s(S_H)}, s2, 31")
    g(f"""  s_and_b32 {s(S_RG)}, s3, 1
  s_lshr_b32 {s(S_KH)}, s3, 1
  s_lshl_b32 s44, {s(S_B)}, 5
  s_add_u32 s44, s44, {s(S_H)}
  s_lshl_b32 s44, s44, 19
  s_mul_i32 s45, {s(S_B)}, 221184
  s_lshl_b32 s46, {s(S_H)}, 8
  s_waitcnt lgkmcnt(0)
  s_add_u32 s16, s4, s45
  s_addc_u32 s17, s5, 0
  s_and_b32 s17, s17, 0xffff
  s_mov_b32 s18, 221184
  s_mov_b32 s19, 0x20000
  s_add_u32 s20, s30, s46
  s_addc_u32 s21, s31, 0
  s_and_b32 s21, s21, 0xffff
  s_sub_u32 s22, {576*8192}, s46
  s_mov_b32 s23, 0x20000
  s_add_u32 s8, s6, s44
  s_addc_u32 s9, s7, 0
  s_and_b32 s9, s9, 0xffff
  s_mov_b32 s10, 0x80000
  s_mov_b32 s11, 0x20000
  s_add_u32 s12, s28, s44
  s_addc_u32 s13, s29, 0
  s_and_b32 s13, s13, 0xffff
  s_mov_b32 s14, 0x80000
  s_mov_b32 s15, 0x20000""")
    g.label("L_restart")
    g("""  v_mbcnt_lo_u32_b32 v2, -1, 0
  v_mbcnt_hi_u32_b32 v2, -1, v2
  v_lshrrev_b32 v3, 4, v2
  v_and_b32 v4, 15, v2""")
    g(f"""  v_mul_u32_u24 v5, 1152, v4
  v_lshl_add_u32 {v(VX+8)}, v3, 4, v5
  v_add_u32 {v(VX+9)}, 18432, {v(VX+8)}
  v_add_u32 {v(VX+10)}, 36864, {v(VX+8)}
  s_mul_i32 {s(S_XSO)}, {s(S_RG)}, {96*1152}
  s_mul_i32 s44, {s(S_KH)}, {48*1152}
  s_add_u32 {s(S_XSO)}, {s(S_XSO)}, s44""")
    g(f"""  v_lshlrev_b32 v5, 2, v3
  v_xor_b32 v5, v5, v4
  v_lshlrev_b32 v5, 4, v5
  v_lshl_add_u32 {v(VX+4)}, v3, 13, v5""")
    for p in range(1, 4):
        g(f"  v_add_u32 {v(VX+4+p)}, {p*(4*8192-1024)}, {v(VX+4)}")
    g(f"""  s_lshl_b32 s44, {s(S_RG)}, 13
  s_add_u32 {s(S_WM)}, s44, {WB}
  s_lshl_b32 {s(S_WSO)}, {s(S_RG)}, 18""")
    tpr = cfg.get("touch_per_row", 4)
    sh = {2: 1, 4: 2, 8: 3}[tpr]
    g(f"""  s_lshl_b32 s44, {s(S_RG)}, 6
  v_add_u32 v5, s44, v2
  v_lshrrev_b32 v6, {sh}, v5
  v_and_b32 v5, {tpr-1}, v5
  v_lshlrev_b32 v5, {8-sh}, v5
  v_lshl_add_u32 {v(VX+11)}, v6, 13, v5
  s_and_b32 s44, {s(S_B)}, 3
  s_mul_i32 s44, s44, {96*8192}
  s_add_u32 {s(S_T3)}, s44, {192*8192}""")
    for p in range(4):
        g(f"""  v_add_u32 v7, {4*p}, v3
  v_xor_b32 v7, v7, v4
  v_lshlrev_b32 v7, 4, v7
  v_lshl_add_u32 {v(VKD+p)}, v3, 8, v7""")
    for p in range(2):
        g(f"""  v_add_u32 v7, {4*p}, v3
  v_lshlrev_b32 v7, 1, v7
  v_xor_b32 v7, v7, v4
  v_lshlrev_b32 v7, 4, v7
  v_lshl_add_u32 {v(VVD+p)}, v3, 8, v7""")
    g(f"""  s_lshl_b32 {s(S_BLK0)}, {s(S_RG)}, 12
  s_add_u32 {s(S_BLK1)}, {s(S_BLK0)}, 8192""")

    def setup(g):
        g("  v_lshrrev_b32 v9, 2, v4\n  v_and_b32 v10, 3, v4")
        g(f"""  v_lshlrev_b32 v11, 2, v9
  v_xor_b32 v11, v11, v10
  v_lshlrev_b32 v11, 4, v11
  v_lshl_add_u32 v12, v3, 3, v9
  v_lshl_add_u32 v11, v12, 8, v11""")
        for ksp in range(4):
            g(f"  v_xor_b32 v12, {ksp*64}, v11\n  v_add_u32 {v(VX+ksp)}, {WB}, v12")
        g(f"""  s_lshl_b32 s44, {s(S_KH)}, 13
  v_xor_b32 v8, v3, v4
  v_lshlrev_b32 v8, 4, v8
  v_lshl_add_u32 v8, v4, 8, v8
  v_add_u32 v8, s44, v8""")
        for ks in range(4):
            g(f"  v_xor_b32 {v(VKA+ks)}, {ks*64}, v8")
            g(f"  v_add_u32 {v(VKA+4+ks)}, 0x10000, {v(VKA+ks)}")
        g(f"""  v_and_b32 v11, 1, v3
  v_lshl_add_u32 v11, v11, 2, v9
  v_lshlrev_b32 v11, 1, v11
  v_lshrrev_b32 v12, 1, v10
  v_xor_b32 v11, v11, v12
  v_lshlrev_b32 v11, 4, v11
  v_and_b32 v12, 1, v10
  v_lshl_add_u32 v11, v12, 3, v11
  v_lshl_add_u32 v12, v3, 2, v9
  v_lshl_add_u32 v11, v12, 8, v11
  v_add_u32 v11, s44, v11
  v_add_u32 v11, 16384, v11""")
        for dt in range(8):
            g(f"  v_xor_b32 {v(VVA+dt)}, {dt*32}, v11")
            g(f"  v_add_u32 {v(VVA+8+dt)}, 0x10000, {v(VVA+dt)}")
        g(f"""  v_cmp_eq_u32 vcc, 0, v10
  v_mov_b32 v12, 0x3f803f80
  v_cndmask_b32 {v(VONE)}, 0, v12, vcc
  v_mov_b32 {v(VONE+1)}, {v(VONE)}
  v_mov_b32 {v(VONE+2)}, {v(VONE)}
  v_mov_b32 {v(VONE+3)}, {v(VONE)}""")
        sc = f2u(math.log2(math.e) / math.sqrt(128.0))
        g(f"""  v_lshlrev_b32 {v(VL16)}, 4, v2
  s_mul_i32 s44, {s(S_RG)}, 24576
  s_add_u32 s44, s44, {WB}
  v_add_u32 {v(VX+17)}, s44, {v(VL16)}
  s_mul_i32 s45, {s(S_KH)}, 12288
  s_add_u32 s44, s44, s45
  v_add_u32 {v(VX+16)}, s44, {v(VL16)}
  s_mov_b32 {s(S_SC)}, {hex(sc)}
  s_mov_b32 {s(S_SC+1)}, {hex(sc)}
  s_lshl_b32 {s(S_M0B)}, s3, 12
  s_add_u32 {s(S_KOFF)}, {s(S_M0B)}, {4*16384}
  s_add_u32 {s(S_VOFF)}, {s(S_M0B)}, {3*16384}""")
    cfg["_setup"] = setup
    g(f"  s_cmp_eq_u32 {s(S_KH)}, 0\n  s_cbranch_scc0 L_qp1")
    qproj_variant(g, 0)
    g("  s_branch L_qp_done")
    g.label("L_qp1")
    qproj_variant(g, 1)
    g.label("L_qp_done")
    for qt in range(6):
        for ks in range(4):
            g(f"  ds_read_b128 {v(Q(qt,ks),4)}, {v(VX+17)} offset:{(qt*4+ks)*1024}")
    g.stamp(1)
    g.cstamp(5)
    g(f"  s_cmp_eq_u32 {s(S_PASS)}, 0\n  s_cbranch_scc0 L_maxpass")
    for ks in range(4):
        for kt in range(2):
            g("  " + kread(kt, ks, 3))
    for i in range(24): g(f"  v_mov_b32 {v(VL+i)}, 0")
    for i in range(8): g(f"  v_mov_b32 {v(P(1)+i)}, 0")
    g("  s_waitcnt lgkmcnt(0)")
    for ks in range(4):
        for qt in range(6):
            c = "0" if ks == 0 else v(NM(qt), 4)
            g(f"  {MF} {v(NM(qt),4)}, {a(KF(0,ks),4)}, {v(Q(qt,ks),4)}, {c}")
    g("  s_nop 7")
    def rowmax_finish():
        for qt in range(6): g(f"  v_mov_b32 {v(NM(qt)+1)}, {v(NM(qt))}")
        g("  s_nop 1")
        for qt in range(6): g(f"  v_permlane32_swap_b32 {v(NM(qt))}, {v(NM(qt)+1)}")
        g("  s_nop 1")
        for qt in range(6): g(f"  v_max_f32 {v(NM(qt))}, {v(NM(qt))}, {v(NM(qt)+1)}")
        for qt in range(6): g(f"  v_mov_b32 {v(NM(qt)+1)}, {v(NM(qt))}")
        g("  s_nop 1")
        for qt in range(6): g(f"  v_permlane16_swap_b32 {v(NM(qt))}, {v(NM(qt)+1)}")
        g("  s_nop 1")
        for qt in range(6): g(f"  v_max_f32 {v(NM(qt))}, {v(NM(qt))}, {v(NM(qt)+1)}")
        for qt in range(6):
            g(f"  v_sub_f32 {v(NM(qt))}, 0, {v(NM(qt))}")
        for qt in range(6):
            for r in range(1, 4): g(f"  v_mov_b32 {v(NM(qt)+r)}, {v(NM(qt))}")
    for qt in range(6):
        g(f"  v_max3_f32 {v(NM(qt))}, {v(NM(qt))}, {v(NM(qt)+1)}, {v(NM(qt)+2)}")
    for qt in range(6):
        g(f"  v_max_f32 {v(NM(qt))}, {v(NM(qt))}, {v(NM(qt)+3)}")
    rowmax_finish()
    g.label("L_join")
    g("  s_nop 1")
    for m in qk_mfmas(0, 0): g("  " + m)
    g(f"  s_mov_b32 {s(S_CNT)}, 0")
    g.label("L_loop")
    for t in range(4):
        g(f"  s_waitcnt vmcnt({cfg.get('vm',16)})")
        g("  s_barrier")
        if cfg.get("trace"):
            g("  s_memrealtime s[76:77]\n  s_memtime s[80:81]")
            g(f"  s_lshl_b32 s78, {s(S_CNT)}, 2\n  s_add_u32 s78, s78, {t}")
        for j in range(3):
            stage(g, t, j)
    g(f"  s_add_u32 {s(S_CNT)}, {s(S_CNT)}, 1\n  s_cmp_lt_u32 {s(S_CNT)}, 8\n  s_cbranch_scc1 L_loop")
    for m in pv_mfmas(2, 1): g("  " + m)
    g.stamp(2)
    g.cstamp(6)
    g(f"""  v_lshrrev_b32 {v(VX)}, 2, {v(VL16)}
  s_mul_i32 s44, s3, 3072
  s_add_u32 s44, s44, {STATS}
  v_add_u32 {v(VX+1)}, s44, {v(VX)}
  s_xor_b32 s45, s3, 2
  s_mul_i32 s44, s45, 3072
  s_add_u32 s44, s44, {STATS}
  v_add_u32 {v(VX+2)}, s44, {v(VX)}
  s_nop 4""")
    for qt in range(6):
        g(f"  ds_write_b32 {v(VX+1)}, {v(NM(qt))} offset:{qt*512}")
        g(f"  ds_write_b32 {v(VX+1)}, {v(L(qt))} offset:{qt*512+256}")
    g("  s_waitcnt vmcnt(0) lgkmcnt(0)\n  s_barrier")
    for qt in range(6):
        g(f"  ds_read_b32 {v(S(0)+2*qt)}, {v(VX+2)} offset:{qt*512}")
        g(f"  ds_read_b32 {v(S(0)+2*qt+1)}, {v(VX+2)} offset:{qt*512+256}")
    if cfg.get("wopf", 1):
        g(f"""  s_mov_b32 {s(SWO)}, {s(S_WOP)}
  s_and_b32 {s(SWO+1)}, {s(S_WOP+1)}, 0xffff
  s_mov_b32 {s(SWO+2)}, {4096*1152}
  s_mov_b32 {s(SWO+3)}, 0x20000
  s_mul_i32 s44, s2, 18432
  s_mul_i32 s45, s3, 4608
  s_add_u32 s44, s44, s45""")
        for i in range(5):
            g(f"  buffer_load_dwordx4 {v(VX+24,4)}, {v(VL16)}, {s(SWO,4)}, s44 offen offset:{min(1024*i, 3584)}")
    g(f"""  s_mul_i32 s44, s3, 24576
  v_add_u32 {v(VX+8)}, s44, {v(VL16)}
  s_xor_b32 s45, s3, 2
  s_mul_i32 s44, s45, 24576
  v_add_u32 {v(VX+9)}, s44, {v(VL16)}
  s_mul_i32 s44, {s(S_RG)}, 6
  s_mul_i32 s45, {s(S_B)}, 12
  s_add_u32 s44, s44, s45
  s_lshl_b32 s44, s44, 5
  s_add_u32 s44, s44, {s(S_H)}
  s_lshl_b32 {s(S_T2)}, s44, 12
  s_mov_b32 s24, s32
  s_and_b32 s25, s33, 0xffff
  s_mov_b32 s26, {8*12*128*1024}
  s_mov_b32 s27, 0x20000
  s_waitcnt lgkmcnt(0)""")
    LS = VX + 6
    g(f"  v_add_f32 {v(LS)}, {v(L(0))}, {v(L(1))}")
    for qt in range(2, 6): g(f"  v_add_f32 {v(LS)}, {v(LS)}, {v(L(qt))}")
    for qt in range(6):
        nmo, nmp, lp = NM(qt), S(0) + 2 * qt, S(0) + 2 * qt + 1
        t, fo, fp = VX + 3, VX + 4, VX + 5
        go, gp = S(0) + 0, 0
        g(f"""  v_min_f32 {v(t)}, {v(nmo)}, {v(nmp)}
  v_sub_f32 {v(fo)}, {v(t)}, {v(nmo)}
  v_sub_f32 {v(fp)}, {v(t)}, {v(nmp)}
  v_exp_f32 {v(fo)}, {v(fo)}
  v_exp_f32 {v(fp)}, {v(fp)}
  s_nop 0
  v_mul_f32 {v(t)}, {v(L(qt))}, {v(fo)}
  v_fma_f32 {v(t)}, {v(lp)}, {v(fp)}, {v(t)}
  v_rcp_f32 {v(t)}, {v(t)}
  s_nop 0
  v_mul_f32 {v(NM(qt))}, {v(fo)}, {v(t)}
  v_mul_f32 {v(NM(qt)+2)}, {v(fp)}, {v(t)}""")
    for qt in range(6):
        go, gp = 96 + 4 * qt, 96 + 4 * qt + 2
        g(f"""  v_mov_b32 {v(go)}, {v(NM(qt))}
  v_mov_b32 {v(go+1)}, {v(NM(qt))}
  v_mov_b32 {v(gp)}, {v(NM(qt)+2)}
  v_mov_b32 {v(gp+1)}, {v(NM(qt)+2)}""")
    g(f"  s_cmp_eq_u32 {s(S_KH)}, 0\n  s_cbranch_scc0 L_ep1")
    epilogue_variant(g, 0)
    g("  s_branch L_ep_done")
    g.label("L_ep1")
    epilogue_variant(g, 1)
    g.label("L_ep_done")
    CH = VX + 10
    g(f"""  v_add_f32 {v(CH)}, {v(CH)}, {v(CH+1)}
  v_sub_f32 {v(CH)}, {v(CH)}, {v(CH)}
  v_cmp_u_f32 vcc, {v(CH)}, {v(CH)}
  s_mov_b64 s[46:47], vcc
  v_mov_b32 {v(CH+1)}, {hex(f2u(LTHR))}
  v_cmp_nle_f32 vcc, {v(LS)}, {v(CH+1)}
  s_or_b64 s[46:47], s[46:47], vcc
  s_cmp_lg_u64 s[46:47], 0
  s_cselect_b32 s44, 1, 0
  s_lshl_b32 s45, s3, 2
  s_add_u32 s45, s45, {FLAGS}
  v_mov_b32 {v(CH)}, s44
  v_mov_b32 {v(CH+1)}, s45
  ds_write_b32 {v(CH+1)}, {v(CH)}
  s_waitcnt lgkmcnt(0)
  s_barrier
  v_mov_b32 {v(CH+1)}, {FLAGS}
  ds_read_b128 {v(VX+12,4)}, {v(CH+1)}
  s_waitcnt lgkmcnt(0)
  v_or3_b32 {v(CH)}, {v(VX+12)}, {v(VX+13)}, {v(VX+14)}
  v_or_b32 {v(CH)}, {v(CH)}, {v(VX+15)}
  s_nop 0
  v_readfirstlane_b32 s44, {v(CH)}
  s_xor_b32 s45, {s(S_PASS)}, 1
  s_and_b32 s44, s44, s45
  s_cmp_lg_u32 s44, 0
  s_cbranch_scc1 L_fallback""")
    g("  s_waitcnt vmcnt(0)")
    if cfg.get("stamps"):
        g.stamp(7)
        g(f"""  s_add_u32 s30, s32, {hex(STAMP_OFF)}
  s_addc_u32 s31, s33, 0
  s_lshl_b32 s44, s2, 6
  s_add_u32 s30, s30, s44
  s_addc_u32 s31, s31, 0
  v_mov_b32 v24, 0
  s_cmp_eq_u32 s3, 0
  s_cbranch_scc0 L_k1_end
  v_cmp_eq_u32 vcc, 0, {v(VL16)}
  s_and_saveexec_b64 s[46:47], vcc
  s_cbranch_execz L_k1_end""")
        for i in (0, 1, 2, 3, 5, 6, 7):
            g(f"  v_mov_b32 v20, {s(S_STAMP+2*i)}\n  v_mov_b32 v21, {s(S_STAMP+2*i+1)}\n  global_store_dwordx2 v24, v[20:21], s[30:31] offset:{8*i}\n  s_nop 1")
        g("  s_waitcnt vmcnt(0)")
        if cfg.get("trace"):
            g(f"""  s_mov_b64 exec, -1
  s_add_u32 s30, s32, {hex(STAMP_OFF - 0xc000)}
  s_addc_u32 s31, s33, 0
  s_lshl_b32 s44, s2, 7
  s_add_u32 s30, s30, s44
  s_addc_u32 s31, s31, 0
  v_lshrrev_b32 v24, 2, {v(VL16)}
  v_cmp_gt_u32 vcc, 128, v24
  s_and_saveexec_b64 s[46:47], vcc
  global_store_dword v24, v250, s[30:31]
  s_sub_u32 s30, s30, 0x8000
  s_subb_u32 s31, s31, 0
  global_store_dword v24, v251, s[30:31]
  s_waitcnt vmcnt(0)""")
    g.label("L_k1_end")
    g("  s_endpgm")
    g.label("L_fallback")
    g(f"""  s_waitcnt vmcnt(0) lgkmcnt(0)
  s_mov_b32 {s(S_PASS)}, 1
  s_barrier
  s_branch L_restart""")
    g.label("L_maxpass")
    for i in range(24): g(f"  v_mov_b32 {v(VL+i)}, 0")
    for i in range(8): g(f"  v_mov_b32 {v(P(1)+i)}, 0")
    for qt in range(6): g(f"  v_mov_b32 {v(NM(qt))}, 0xff800000")
    g(f"""  s_mov_b32 {s(S_CNT)}, 0
  s_mov_b32 {s(S_T1)}, {s(S_M0B)}
  s_waitcnt vmcnt(0) lgkmcnt(0)
  s_barrier""")
    g.label("L_mp_loop")
    g(f"  s_add_u32 m0, {s(S_M0B)}, {3*SLOT}\n  s_nop 0")
    for p in range(4):
        g(f"  buffer_load_dwordx4 {v(VKD+p)}, {s(SK,4)}, {s(S_T1)} offen offset:{1024*p} lds")
    g("  s_waitcnt vmcnt(0)\n  s_barrier")
    for ks in range(4):
        for kt in range(2):
            g("  " + kread(kt, ks, 3))
    g("  s_waitcnt lgkmcnt(0)\n  s_barrier")
    for j in range(3):
        for m in qk_mfmas(j, 0, czero=True): g("  " + m)
        g("  s_nop 7")
        for qi in range(2):
            qt = 2 * j + qi
            for kt in range(2):
                b = S(0, kt, qi)
                g(f"  v_max3_f32 {v(NM(qt))}, {v(NM(qt))}, {v(b)}, {v(b+1)}")
                g(f"  v_max3_f32 {v(NM(qt))}, {v(NM(qt))}, {v(b+2)}, {v(b+3)}")
        g("  s_nop 1")
    g(f"""  s_add_u32 {s(S_T1)}, {s(S_T1)}, 16384
  s_add_u32 {s(S_CNT)}, {s(S_CNT)}, 1
  s_cmp_lt_u32 {s(S_CNT)}, 32
  s_cbranch_scc1 L_mp_loop""")
    rowmax_finish()
    g(f"  s_add_u32 m0, {s(S_M0B)}, {3*SLOT}\n  s_nop 0")
    for p in range(4):
        g(f"  buffer_load_dwordx4 {v(VKD+p)}, {s(SK,4)}, {s(S_M0B)} offen offset:{1024*p} lds")
    g("  s_waitcnt vmcnt(0)\n  s_barrier")
    for ks in range(4):
        for kt in range(2):
            g("  " + kread(kt, ks, 3))
    g("  s_waitcnt lgkmcnt(0)\n  s_branch L_join")

def gen_k2(g):
    cfg = g.cfg
    NPF = cfg.get("k2_depth", 6)
    RING = 8
    g(f".globl {K2}\n.p2align 8\n.type {K2},@function\n{K2}:")
    g("  s_cmp_ge_u32 s2, 216\n  s_cbranch_scc1 L_k2_end")
    g("  s_load_dwordx4 s[4:7], s[0:1], 32\n  s_load_dwordx2 s[32:33], s[0:1], 56")
    if cfg.get("stamps"): g(f"  s_memrealtime {s(S_STAMP,2)}")
    g("""  v_lshrrev_b32 v1, 6, v0
  v_and_b32 v2, 63, v0
  s_and_b32 s34, s2, 7                 ; b
  v_readfirstlane_b32 s3, v1
  s_lshr_b32 s35, s2, 3                ; qp*9+nt
  s_mul_i32 s36, s35, 57
  s_lshr_b32 s36, s36, 9               ; qp
  s_mul_i32 s37, s36, 9
  s_sub_u32 s37, s35, s37              ; nt
  v_lshrrev_b32 v3, 4, v2
  v_and_b32 v4, 15, v2
  v_lshlrev_b32 v10, 4, v2""")
    g("""  v_lshrrev_b32 v7, 3, v2
  v_and_b32 v8, 7, v2
  v_lshrrev_b32 v9, 1, v7
  v_and_b32 v9, 3, v9
  v_lshlrev_b32 v9, 1, v9
  v_xor_b32 v8, v8, v9
  v_lshlrev_b32 v8, 4, v8
  v_mul_u32_u24 v7, 1152, v7
  v_add_u32 v11, v7, v8
  v_add_u32 v12, 8192, v11
  v_add_u32 v13, 16384, v11
  v_add_u32 v14, 24576, v11""")
    g("""  s_mul_i32 s44, s34, 12
  s_lshl_b32 s45, s36, 2
  s_add_u32 s44, s44, s45
  s_lshl_b32 s44, s44, 17
  s_lshl_b32 s45, s3, 15
  s_add_u32 s38, s44, s45""")
    g(f"  s_mul_i32 s40, s3, {1024*1152}")
    g("  s_lshl_b32 s41, s3, 15")
    g("  s_waitcnt lgkmcnt(0)")
    g(f"""  s_lshl_b32 s44, s37, 7
  s_add_u32 s8, s4, s44
  s_addc_u32 s9, s5, 0
  s_and_b32 s9, s9, 0xffff
  s_sub_u32 s10, {4096*1152}, s44
  s_mov_b32 s11, 0x20000
  s_mov_b32 s12, s32
  s_and_b32 s13, s33, 0xffff
  s_mov_b32 s14, {8*12*128*1024}
  s_mov_b32 s15, 0x20000
  s_mov_b32 s16, s6
  s_and_b32 s17, s7, 0xffff
  s_mov_b32 s18, {8*192*1152}
  s_mov_b32 s19, 0x20000""")
    ACC = lambda mt, nt: 32 + (mt * 4 + nt) * 4
    NB = NPF + 1
    BF = lambda k, nt: 96 + ((k % NB) * 4 + nt) * 4
    AFB = 96 + NB * 16
    AF = lambda k, mt: AFB + ((k & 1) * 4 + mt) * 4
    assert AFB + 32 <= 256
    def issue(k):
        L_ = []
        L_.append(f"s_add_u32 m0, s41, {(k % RING)*4096}")
        L_.append(f"s_add_u32 s44, s40, {k*32*1152}")
        for p in range(4):
            L_.append(f"buffer_load_dwordx4 {v(11+p)}, s[8:11], s44 offen offset:{1024*p} lds")
        for nt in range(4):
            L_.append(f"s_add_u32 s45, s38, {nt*131072 + k*1024}")
            L_.append(f"buffer_load_dwordx4 {v(BF(k,nt),4)}, v10, s[12:15], s45 offen")
        return L_
    def areads(k):
        L_ = []
        for mt in range(4):
            for half in range(2):
                L_.append(f"ds_read_b64_tr_b16 {v(AF(k,mt)+2*half,2)}, {v(16+mt)} offset:{(k%RING)*4096 + half*2048}")
        return L_
    assert NPF + 1 <= RING
    for k in range(NPF):
        for ins in issue(k): g("  " + ins)
    g("""  v_lshrrev_b32 v7, 2, v4             ; r
  v_and_b32 v8, 3, v4                  ; c
  v_lshl_add_u32 v9, v3, 2, v7         ; row = 4g+r
  v_lshrrev_b32 v5, 1, v9
  v_and_b32 v5, 3, v5
  v_lshlrev_b32 v5, 1, v5
  v_lshrrev_b32 v6, 1, v8
  v_xor_b32 v5, v5, v6
  v_lshlrev_b32 v5, 4, v5
  v_and_b32 v6, 1, v8
  v_lshl_add_u32 v5, v6, 3, v5
  v_lshl_add_u32 v5, v9, 7, v5
  v_add_u32 v16, s41, v5
  v_xor_b32 v17, 32, v16
  v_xor_b32 v18, 64, v16
  v_xor_b32 v19, 96, v16""")
    g(f"  s_waitcnt vmcnt({8*(NPF-1)})")
    for ins in areads(0): g("  " + ins)
    NK = 32
    for k in range(NK):
        nxt = issue(k + NPF) if k + NPF < NK else []
        outstanding_after = min(NK, k + NPF + 1) - (k + 2)
        mf = []
        for mt in range(4):
            for nt in range(4):
                c = "0" if k == 0 else v(ACC(mt, nt), 4)
                mf.append(f"{MF} {v(ACC(mt,nt),4)}, {v(AF(k,mt),4)}, {v(BF(k,nt),4)}, {c}")
        g("  s_waitcnt lgkmcnt(0)")
        spread(g, mf[:8], nxt)
        if k + 1 < NK:
            g(f"  s_waitcnt vmcnt({8*max(0,outstanding_after)})")
            spread(g, mf[8:], areads(k + 1))
        else:
            spread(g, mf[8:], [])
    g.stamp(2)
    PITCH = 272
    g("  s_nop 7\n  s_barrier")
    g(f"""  v_mul_u32_u24 v7, {PITCH}, v4
  v_lshl_add_u32 v7, v3, 4, v7
  s_mul_i32 s45, s3, {64*PITCH}
  v_add_u32 v7, s45, v7""")
    for mt in range(4):
        for nt in range(4):
            g(f"  ds_write_b128 v7, {v(ACC(mt,nt),4)} offset:{nt*16*PITCH + mt*64}")
    g("  s_waitcnt lgkmcnt(0)\n  s_barrier")
    g(f"""  v_lshrrev_b32 v7, 3, v0
  v_and_b32 v8, 7, v0
  v_mul_u32_u24 v9, {PITCH}, v7
  v_lshl_add_u32 v9, v8, 5, v9""")
    for i in range(2):
        for w in range(4):
            for hq in range(2):
                g(f"  ds_read_b128 {v(96 + ((i*4+w)*2+hq)*4, 4)}, v9 offset:{i*32*PITCH + w*64*PITCH + hq*16}")
    g(f"""  s_mul_i32 s45, s34, 192
  s_lshl_b32 s46, s36, 6
  s_add_u32 s45, s45, s46
  s_mul_i32 s45, s45, 1152
  s_lshl_b32 s46, s37, 7
  s_add_u32 s45, s45, s46
  v_mul_u32_u24 v7, 1152, v7
  v_lshl_add_u32 v7, v8, 4, v7""")
    for i in range(2):
        g(f"  s_waitcnt lgkmcnt({8 if i == 0 else 0})")
        b0 = 96 + i * 32
        for w in range(1, 4):
            for e in range(0, 8, 2):
                g(f"  v_pk_add_f32 {v(b0+e,2)}, {v(b0+e,2)}, {v(b0+w*8+e,2)}")
        for e in range(4):
            g(f"  v_cvt_pk_bf16_f32 {v(b0+e)}, {v(b0+2*e)}, {v(b0+2*e+1)}")
        g(f"  s_add_u32 s46, s45, {i*32*1152}")
        g(f"  buffer_store_dwordx4 {v(b0,4)}, v7, s[16:19], s46 offen")
    g("  s_waitcnt vmcnt(0)")
    if cfg.get("stamps"):
        g.stamp(7)
        g(f"""  s_add_u32 s30, s32, {hex(STAMP_OFF - 0x4000)}
  s_addc_u32 s31, s33, 0
  s_lshl_b32 s44, s2, 6
  s_add_u32 s30, s30, s44
  s_addc_u32 s31, s31, 0
  v_mov_b32 v24, 0
  v_cmp_eq_u32 vcc, 0, v0
  s_and_saveexec_b64 s[46:47], vcc
  s_cbranch_execz L_k2_end""")
        for i in (0, 2, 7):
            g(f"  v_mov_b32 v20, {s(S_STAMP+2*i)}\n  v_mov_b32 v21, {s(S_STAMP+2*i+1)}\n  global_store_dwordx2 v24, v[20:21], s[30:31] offset:{8*i}\n  s_nop 1")
        g("  s_waitcnt vmcnt(0)")
    g.label("L_k2_end")
    g("  s_endpgm")

def generate(cfg):
    g = Gen(cfg)
    g(HEADER.rstrip())
    if cfg.get("only") != 2:
        g(f"; @launch kernel={K1} grid=(256,1,1) block=(256,1,1) lds=163840")
    if cfg.get("only") != 1:
        g(f"; @launch kernel={K2} grid=(216,1,1) block=(256,1,1) lds=131072")
    g('.amdgcn_target "amdgcn-amd-amdhsa--gfx950"\n.text')
    gen_k1(g)
    gen_k2(g)
    g('.section .rodata,"a"\n.p2align 6')
    g(kernel_desc(K1, 512, 96, 256))
    g(".p2align 6")
    g(kernel_desc(K2, 256, 96, 256))
    return g.text()

if __name__ == "__main__":
    import json
    out = sys.argv[1]
    cfg = json.loads(sys.argv[2]) if len(sys.argv) > 2 else {}
    open(out, "w").write(generate(cfg))
```

```python
import sys, math, struct
from asmlib import *

def f2u(x): return struct.unpack("<I", struct.pack("<f", x))[0]
def v(b, n=1): return f"v{b}" if n == 1 else f"v[{b}:{b+n-1}]"
def a(b, n=1): return f"a{b}" if n == 1 else f"a[{b}:{b+n-1}]"
def s(b, n=1): return f"s{b}" if n == 1 else f"s[{b}:{b+n-1}]"
MF = "v_mfma_f32_16x16x32_bf16"

K1 = "attn_fused_kernel"
K2 = "outproj_kernel"

VQ = 0
VS = 96
VP = 128
VNM = 144
VL = 168
VONE = 192
VKA = 196
VVA = 204
VKD = 220
VVD = 224
VL16 = 226
VX = 228
AO = 0
AK = 192
AV = 224

def Q(qt, ks): return VQ + (qt * 4 + ks) * 4
def S(p, kt=0, qi=0): return VS + 16 * p + (kt * 2 + qi) * 4
def P(p, qi=0): return VP + 8 * p + 4 * qi
def NM(qt): return VNM + 4 * qt
def L(qt): return VL + 4 * qt
def O(qt, dt): return AO + (qt * 8 + dt) * 4
def KF(kt, ks): return AK + (ks * 2 + kt) * 4
def VF(dt): return AV + 4 * dt

SK, SV, SX, SW, SO = 8, 12, 16, 20, 24
S_B, S_H, S_RG, S_KH = 34, 35, 36, 37
S_KOFF, S_VOFF, S_CNT, S_PASS, S_M0B = 38, 39, 40, 41, 43
S_T0, S_T1, S_T2, S_T3 = 44, 45, 46, 47
S_SC = 48
S_WM, S_XM, S_XSO, S_WSO = 50, 51, 54, 55
S_J = 56
S_STAMP = 60
SWO = 84
S_WOP = 58

SLOT = 32768
WB = 114688
STATS = 131072
FLAGS = 163840 - 64
STAMP_OFF = 0x1fffc000
LTHR = 2.0 ** 40

class Gen(Asm):
    def __init__(self, cfg):
        super().__init__()
        self.cfg = cfg
    def stamp(self, i):
        if self.cfg.get("stamps"):
            self(f"  s_memrealtime {s(S_STAMP + 2*i, 2)}\n  s_waitcnt lgkmcnt(0)")
    def tstamp(self, i):
        if self.cfg.get("qtrace"):
            self(f"  s_memrealtime s[76:77]\n  s_waitcnt lgkmcnt(0)\n  v_writelane_b32 v250, s76, {i}")
    def cstamp(self, i):
        if self.cfg.get("stamps"):
            self(f"  s_memtime {s(S_STAMP + 2*i, 2)}\n  s_waitcnt lgkmcnt(0)")

class VM:
    def __init__(self): self.ops = []
    def issue(self, tag, n=1): self.ops += [tag] * n
    def wait_for(self, *tags):
        last = -1
        for i, t in enumerate(self.ops):
            if t in tags: last = i
        n = len(self.ops) - 1 - last
        return min(n, 63)

def spread(g, mfmas, extra, cap=2):
    n = len(mfmas)
    per = [[] for _ in range(n)]
    for idx, ins in enumerate(extra):
        per[min(n - 1, idx * n // max(1, len(extra)))].append(ins)
    for i in range(n):
        g("  " + mfmas[i])
        for ins in per[i]: g("  " + ins)

def dma_k(slot):
    L_ = [(f"s_add_u32 m0, {s(S_M0B)}, {slot*SLOT}", 4)]
    L_.append(("s_nop 0", 0))
    for p in range(4):
        L_.append((f"buffer_load_dwordx4 {v(VKD+p)}, {s(SK,4)}, {s(S_KOFF)} offen offset:{1024*p} nt lds", 4))
    L_.append((f"s_add_u32 {s(S_KOFF)}, {s(S_KOFF)}, 16384", 4))
    return L_
def dma_v(slot):
    L_ = [(f"s_add_u32 m0, {s(S_M0B)}, {slot*SLOT+16384}", 4)]
    L_.append(("s_nop 0", 0))
    for p in range(4):
        L_.append((f"buffer_load_dwordx4 {v(VVD+(p&1))}, {s(SV,4)}, {s(S_VOFF)} offen offset:{1024*p} nt lds", 4))
    L_.append((f"s_add_u32 {s(S_VOFF)}, {s(S_VOFF)}, 16384", 4))
    return L_

def kread(kt, ks, slot):
    base = VKA + (0 if slot < 2 else 4) + ks
    return f"ds_read_b128 {a(KF(kt,ks),4)}, {v(base)} offset:{(slot&1)*SLOT + kt*4096}"
def vread(dt, half, slot):
    base = VVA + (0 if slot < 2 else 8) + dt
    return f"ds_read_b64_tr_b16 {a(VF(dt)+2*half,2)}, {v(base)} offset:{(slot&1)*SLOT + half*4096}"

def qk_mfmas(j, sp, czero=False):
    L_ = []
    for ks in range(4):
        for kt in range(2):
            for qi in range(2):
                d = S(sp, kt, qi)
                c = (("0" if czero else v(NM(2*j+qi), 4)) if ks == 0 else v(d, 4))
                L_.append(f"{MF} {v(d,4)}, {a(KF(kt,ks),4)}, {v(Q(2*j+qi,ks),4)}, {c}")
    return L_
def pv_mfmas(j, pp):
    L_ = []
    for dt in range(8):
        for qi in range(2):
            d = O(2*j+qi, dt)
            L_.append(f"{MF} {a(d,4)}, {a(VF(dt),4)}, {v(P(pp,qi),4)}, {a(d,4)}")
    for qi in range(2):
        d = L(2*j+qi)
        L_.append(f"{MF} {v(d,4)}, {v(VONE,4)}, {v(P(pp,qi),4)}, {v(d,4)}")
    return L_

def softmax_items(p):
    exps = []; cvts = []
    for qi in range(2):
        for kt in range(2):
            for h in range(2):
                r0 = S(p, kt, qi) + 2 * h
                exps.append(f"v_exp_f32 {v(r0)}, {v(r0)}")
                exps.append(f"v_exp_f32 {v(r0+1)}, {v(r0+1)}")
                cvts.append((f"v_cvt_pk_bf16_f32 {v(P(p,qi)+2*kt+h)}, {v(r0)}, {v(r0+1)}", len(exps)))
    return exps, cvts

def stage(g, t, j):
    cfg = g.cfg
    u = 3 * t + j
    par = u & 1
    jn, jp = (j + 1) % 3, (j + 2) % 3
    slot = t & 3
    mf = qk_mfmas(jn, par ^ 1) + pv_mfmas(jp, par ^ 1)
    n = len(mf)
    fixed = {i: [] for i in range(n)}
    pre = []
    dslot = (slot + 3) & 3
    kpos = cfg.get("kdma", (0, 0)); vpos = cfg.get("vdma", (1, 24))
    def place(L_, start):
        grp = [L_[0:3]] + [[x] for x in L_[3:]]
        for i, x in enumerate(grp):
            fixed[min(n - 1, start + i)] += x
    if j == 0:
        for dt in range(8):
            fixed[16 + 2 * dt + 1] += [(vread(dt, 0, slot), 4), (vread(dt, 1, slot), 4)]
    elif j == 1:
        fixed[15] += [("s_waitcnt lgkmcnt(0)", 4)]
        i = 16
        for ks in range(4):
            for kt in range(2):
                fixed[i] += [(kread(kt, ks, slot), 4)]; i += 1
    elif j == 2:
        pre.append("s_waitcnt lgkmcnt(0)")
    if j == kpos[0]: place(dma_k(dslot), kpos[1])
    if j == vpos[0]: place(dma_v(dslot), vpos[1])
    if cfg.get("nodma"):
        fixed = {k: [x for x in L_ if not x[0].startswith("buffer_load")] for k, L_ in fixed.items()}
    exps, cvts = softmax_items(par)
    if cfg.get("nosm"): exps, cvts = [], []
    for ins in pre: g("  " + ins)
    if j == 2 and cfg.get("trace"):
        g("  s_mov_b32 s79, m0\n  s_mov_b32 m0, s78\n  s_nop 0\n  v_writelane_b32 v250, s76, m0\n  v_writelane_b32 v251, s80, m0\n  s_mov_b32 m0, s79\n  s_nop 0")
    ei = ci = 0
    for i in range(n):
        g("  " + mf[i])
        free = 8
        last_was_exp = False
        for ins, c in fixed[i]:
            g("  " + ins); free -= c
        emitted_e_at_start = ei
        while True:
            if ei < len(exps) and free >= 8:
                g("  " + exps[ei]); ei += 1; free -= 8; last_was_exp = True
            elif ci < len(cvts) and free >= 4 and cvts[ci][1] <= emitted_e_at_start and (ei == len(exps) or free < 8):
                g("  " + cvts[ci][0]); ci += 1; free -= 4
            else:
                break
        if i == n - 1:
            if ei < len(exps) or ci < len(cvts):
                while ei < len(exps):
                    g("  " + exps[ei]); ei += 1
                g("  s_nop 0")
                while ci < len(cvts):
                    g("  " + cvts[ci][0]); ci += 1

BB = (0, 40960, 114688)
XA = lambda hi, st: VX + hi * 2 + st
WA = lambda hi, sl: VX + 4 + hi * 2 + sl
XD = lambda p: VX + 8 + p
WD = lambda p: VX + 14 + p
TD = lambda i: VX + 18 + i
EXW, EXR = 252, 253
def qproj(g):
    cfg = g.cfg
    AF = lambda buf, mt: buf * 16 + mt * 4
    BF = lambda buf, qt: 32 + buf * 24 + qt * 4
    ACC = lambda mt, qt: 96 + (mt * 6 + qt) * 4
    xf = cfg.get("xflag", ""); wf = cfg.get("wflag", ""); tf = cfg.get("tflag", "")
    vm = VM()
    def sload(k):
        L_ = []
        bb = BB[k % 3]
        if cfg.get("rot", 1):
            if k > 0:
                L_.append(f"s_add_u32 {s(S_J)}, {s(S_J)}, 1")
                L_.append(f"s_cmp_eq_u32 {s(S_J)}, 9")
                L_.append(f"s_cselect_b32 {s(S_J)}, 0, {s(S_J)}")
            L_.append(f"s_lshl_b32 {s(S_T1)}, {s(S_J)}, 19")
            L_.append(f"s_add_u32 m0, {s(S_WM)}, {bb}")
            L_.append(f"s_add_u32 {s(S_T1)}, {s(S_T1)}, {s(S_WSO)}")
        else:
            L_.append(f"s_add_u32 m0, {s(S_WM)}, {bb}")
            L_.append(f"s_add_u32 {s(S_T1)}, {s(S_WSO)}, {k*64*8192}")
        for p in range(4):
            L_.append(f"buffer_load_dwordx4 {v(WD(p))}, {s(SW,4)}, {s(S_T1)} offen offset:{1024*p}{wf} lds")
        if cfg.get("rot", 1):
            L_.append(f"s_lshl_b32 {s(S_T0)}, {s(S_J)}, 7")
            L_.append(f"s_add_u32 m0, {s(S_XM)}, {bb}")
            L_.append(f"s_add_u32 {s(S_T0)}, {s(S_T0)}, {s(S_XSO)}")
        else:
            L_.append(f"s_add_u32 m0, {s(S_XM)}, {bb}")
            L_.append(f"s_add_u32 {s(S_T0)}, {s(S_XSO)}, {k*128}")
        for p in range(4):
            L_.append(f"buffer_load_dwordx4 {v(XD(p))}, {s(SX,4)}, {s(S_T0)} offen offset:{1024*p}{xf} lds")
        L_.append(f"s_add_u32 m0, {s(S_XM)}, {bb + 4096}")
        L_.append("s_nop 0")
        for p in range(4, 6):
            L_.append(f"buffer_load_dwordx4 {v(XD(p))}, {s(SX,4)}, {s(S_T0)} offen offset:{1024*(p-4)}{xf} lds")
        vm.issue(f"S{k}", 10)
        return L_
    def touch():
        L_ = []
        if cfg.get("ntouch", 0):
            L_.append(f"buffer_load_dword {v(248)}, {v(TD(0))}, {s(SW,4)}, 0 offen{tf}")
            L_.append(f"buffer_load_dword {v(249)}, {v(TD(1))}, {s(SX,4)}, 0 offen{tf}")
            vm.issue("T", 2)
        return L_
    def quad(tag, srd, isK, goff, loff):
        L_ = [f"s_add_u32 m0, {s(S_M0B)}, {loff}", f"s_add_u32 {s(S_T0)}, {s(S_M0B)}, {goff}"]
        for p in range(4):
            vo = VKD + p if isK else VVD + (p & 1)
            L_.append(f"buffer_load_dwordx4 {v(vo)}, {s(srd,4)}, {s(S_T0)} offen offset:{1024*p} nt lds")
        vm.issue(tag, 4)
        return L_
    def G(t):
        return quad(f"G{t}", SK, True, (t + 1) * 16384, t * SLOT) + quad(f"G{t}", SV, False, t * 16384, t * SLOT + 16384)
    K0 = lambda: quad("K0", SK, True, 0, 3 * SLOT)
    g.tstamp(1)
    k0pos = cfg.get("k0pos", 1)
    tpos = cfg.get("tpos", 0)
    pro = (touch() if tpos == 0 else []) + sload(0) + (touch() if tpos == 1 else [])
    if k0pos == 0: pro += K0()
    pro += sload(1)
    for ins in pro: g("  " + ins)
    g.tstamp(2)
    cfg["_setup"](g)
    later = {(0, 0): lambda: sload(2)}
    for k in range(6): later[(k, 1)] = (lambda k=k: sload(k + 3))
    if k0pos == 1:
        later[(5, 1)] = lambda: sload(8) + K0()
    gp = cfg.get("gpos", [[6, 1], [8, 1], None])
    post = []
    for t in range(3):
        if gp[t] is None:
            post.append(t)
        else:
            key = tuple(gp[t]); prev = later.get(key)
            later[key] = (lambda t=t, prev=prev: (prev() if prev else []) + G(t))
    def reads(k, step):
        L_ = []
        hi = 1 if k % 3 == 2 else 0
        bb = 0 if hi else BB[k % 3]
        buf = step
        for mt in range(4):
            sl, hf = mt >> 1, mt & 1
            for half in range(2):
                L_.append(f"ds_read_b64_tr_b16 {v(AF(buf,mt)+2*half,2)}, {v(WA(hi,sl))} offset:{bb + step*8192 + half*1024 + hf*8}")
            if mt == 0:
                for qt in range(6):
                    L_.append(f"ds_read_b128 {v(BF(buf,qt),4)}, {v(XA(hi,step))} offset:{bb + qt*2048}")
        return L_
    def mfmas(k, step):
        L_ = []
        st = 2 * k + step
        for mt in range(4):
            for qt in range(6):
                c = "0" if st == 0 else v(ACC(mt, qt), 4)
                L_.append(f"{MF} {v(ACC(mt,qt),4)}, {v(AF(step,mt),4)}, {v(BF(step,qt),4)}, {c}")
        return L_
    zl = [f"v_accvgpr_write_b32 {a(i)}, 0" for i in list(range(192)) + list(range(AV, AV + 32))]
    def zeros(n):
        r = zl[:n]; del zl[:n]
        return r
    def mix(*lists):
        tot = sum(len(x) for x in lists)
        out = []; idx = [0] * len(lists)
        for _ in range(tot):
            best = min((i for i in range(len(lists)) if idx[i] < len(lists[i])), key=lambda i: (idx[i] + 0.5) / len(lists[i]))
            out.append(lists[best][idx[best]]); idx[best] += 1
        return out
    def grp(L_):
        out = []; cur = []
        for ins in L_:
            cur.append(ins)
            if ins.startswith("buffer_load"):
                out.append("\n  ".join(cur)); cur = []
        if cur: out.append("\n  ".join(cur))
        return out
    def place(mf, rd, dm, zs):
        n = len(mf)
        per = [[] for _ in range(n)]; cost = [0] * n
        rstep = cfg.get("rstep", 1)
        for i, x in enumerate(rd):
            j = min(n - 1, i * rstep); per[j].append(x); cost[j] += 1
        for i, x in enumerate(dm):
            j = min(n - 1, (i * n) // max(1, len(dm)) + cfg.get("dshift", 0)); per[j].append(x); cost[j] += 1 + x.count("\n")
        for x in zs:
            j = min(range(n), key=lambda q: (cost[q], -q)); per[j].append(x); cost[j] += 1
        for i in range(n):
            g("  " + mf[i])
            for x in per[i]: g("  " + x)
    g(f"  s_waitcnt vmcnt({vm.wait_for('S0')})")
    g.tstamp(3)
    g("  s_barrier")
    g.tstamp(4)
    g.stamp(3)
    for ins in reads(0, 0): g("  " + ins)
    for k in range(9):
        g("  s_waitcnt lgkmcnt(0)")
        lat = later.get((k, 0))
        place(mfmas(k, 0), reads(k, 1), grp(lat()) if lat else [], zeros(25 if k < 8 else len(zl)))
        g("  s_waitcnt lgkmcnt(0)")
        if k < 8:
            g(f"  s_waitcnt vmcnt({vm.wait_for('S%d' % (k+1))})")
        g.tstamp(5 + 2 * k)
        g("  s_barrier")
        g.tstamp(6 + 2 * k)
        lat = later.get((k, 1))
        place(mfmas(k, 1), reads(k + 1, 0) if k < 8 else [], grp(lat()) if lat else [], [])
    assert not zl
    g.tstamp(23)
    g("  s_nop 7")
    for qt in range(6):
        for mt in range(4):
            ac = ACC(mt, qt)
            for i in (0, 2):
                g(f"  v_pk_mul_f32 {v(ac+i,2)}, {v(ac+i,2)}, {s(S_SC,2)}")
    for qt in range(6):
        for sl in range(2):
            q = Q(qt, sl)
            for hf in range(2):
                ac = ACC(2 * sl + hf, qt)
                for i in range(2):
                    g(f"  v_cvt_pk_bf16_f32 {v(q+2*hf+i)}, {v(ac+2*i)}, {v(ac+2*i+1)}")
            g(f"  ds_write_b128 {v(EXW)}, {v(q,4)} offset:{(qt*2+sl)*1024}")
    g(f"  s_waitcnt vmcnt({vm.wait_for('K0')}) lgkmcnt(0)")
    g.tstamp(24)
    g("  s_barrier")
    g.tstamp(25)
    for qt in range(6):
        for sl in range(2):
            g(f"  ds_read_b128 {v(Q(qt,2+sl),4)}, {v(EXR)} offset:{(qt*2+sl)*1024}")
    for t in post:
        for ins in G(t): g("  " + ins)

def epilogue_variant(g, kh):
    keep = [4 * kh + i for i in range(4)]; send = [4 * (1 - kh) + i for i in range(4)]
    for qt in range(6):
        for di, dt in enumerate(send):
            g(f"  ds_write_b128 {v(VX+8)}, {a(O(qt,dt),4)} offset:{(qt*4+di)*1024}")
    g("  s_waitcnt lgkmcnt(0)")
    g("  s_barrier")
    for qt in range(6):
        for di in range(4):
            g(f"  ds_read_b128 {v((qt*4+di)*4,4)}, {v(VX+9)} offset:{(qt*4+di)*1024}")
    CH = VX + 10
    g(f"  v_mov_b32 {v(CH)}, 0\n  v_mov_b32 {v(CH+1)}, 0")
    for qt in range(6):
        go, gp = 96 + 4 * qt, 96 + 4 * qt + 2
        ob = 120 + (qt & 1) * 16
        for di, dt in enumerate(keep):
            for r in range(4):
                g(f"  v_accvgpr_read_b32 {v(ob+4*di+r)}, {a(O(qt,dt)+r)}")
        rem = 24 - (qt + 1) * 4
        g(f"  s_waitcnt lgkmcnt({min(rem,15)})")
        pb = qt * 16
        for i in range(0, 16, 2):
            g(f"  v_pk_mul_f32 {v(pb+i,2)}, {v(pb+i,2)}, {v(gp,2)}")
        for i in range(0, 16, 2):
            g(f"  v_pk_fma_f32 {v(pb+i,2)}, {v(ob+i,2)}, {v(go,2)}, {v(pb+i,2)}")
        for i in range(8):
            g(f"  v_cvt_pk_bf16_f32 {v(ob+i)}, {v(pb+2*i)}, {v(pb+2*i+1)}")
        for sidx in range(2):
            off = qt * 32 * 4 * 1024 + (2 * kh + sidx) * 1024
            g(f"  s_add_u32 {s(S_T0)}, {s(S_T2)}, {off}")
            g(f"  buffer_store_dwordx4 {v(ob+4*sidx,4)}, {v(VL16)}, {s(SO,4)}, {s(S_T0)} offen{g.cfg.get('ostore',' sc1')}")
        for i in range(0, 16, 2):
            g(f"  v_pk_add_f32 {v(CH,2)}, {v(CH,2)}, {v(pb+i,2)}")

def gen_k1(g):
    cfg = g.cfg
    g(f".globl {K1}\n.p2align 8\n.type {K1},@function\n{K1}:")
    g("  s_cmp_ge_u32 s2, 256\n  s_cbranch_scc1 L_k1_end")
    g(f"  s_load_dwordx4 s[4:7], s[0:1], 0\n  s_load_dwordx4 s[28:31], s[0:1], 16\n  s_load_dwordx2 s[32:33], s[0:1], 56\n  s_load_dwordx2 {s(S_WOP,2)}, s[0:1], 32")
    if cfg.get("stamps"): g(f"  s_memrealtime {s(S_STAMP,2)}")
    if cfg.get("qtrace"): g("  v_mov_b32 v250, 0\n  v_mov_b32 v251, 0")
    g(f"  v_lshrrev_b32 v1, 6, v0\n  s_mov_b32 {s(S_PASS)}, 0\n  v_readfirstlane_b32 s3, v1")
    mm = cfg.get("map", 3)
    g("  s_and_b32 s44, s2, 7\n  s_lshr_b32 s45, s2, 3")
    if mm == 2:
        g(f"  s_mov_b32 {s(S_B)}, s44\n  s_mov_b32 {s(S_H)}, s45")
    elif mm == 3:
        g(f"""  s_and_b32 s46, s44, 1
  s_lshl_b32 s46, s46, 2
  s_and_b32 s47, s45, 3
  s_add_u32 {s(S_B)}, s46, s47
  s_lshr_b32 s46, s44, 1
  s_lshl_b32 s46, s46, 3
  s_lshr_b32 s47, s45, 2
  s_add_u32 {s(S_H)}, s46, s47""")
    elif mm == 0:
        g(f"  s_lshr_b32 {s(S_B)}, s2, 5\n  s_and_b32 {s(S_H)}, s2, 31")
    g(f"""  s_and_b32 {s(S_RG)}, s3, 1
  s_lshr_b32 {s(S_KH)}, s3, 1
  s_lshl_b32 s44, {s(S_B)}, 5
  s_add_u32 s44, s44, {s(S_H)}
  s_lshl_b32 s44, s44, 19
  s_mul_i32 s45, {s(S_B)}, 221184
  s_lshl_b32 s46, {s(S_H)}, 8
  s_waitcnt lgkmcnt(0)
  s_add_u32 s16, s4, s45
  s_addc_u32 s17, s5, 0
  s_and_b32 s17, s17, 0xffff
  s_mov_b32 s18, 221184
  s_mov_b32 s19, 0x20000
  s_add_u32 s20, s30, s46
  s_addc_u32 s21, s31, 0
  s_and_b32 s21, s21, 0xffff
  s_sub_u32 s22, {576*8192}, s46
  s_mov_b32 s23, 0x20000
  s_add_u32 s8, s6, s44
  s_addc_u32 s9, s7, 0
  s_and_b32 s9, s9, 0xffff
  s_mov_b32 s10, 0x80000
  s_mov_b32 s11, 0x20000
  s_add_u32 s12, s28, s44
  s_addc_u32 s13, s29, 0
  s_and_b32 s13, s13, 0xffff
  s_mov_b32 s14, 0x80000
  s_mov_b32 s15, 0x20000""")
    g.label("L_restart")
    g("""  v_mbcnt_lo_u32_b32 v2, -1, 0
  v_mbcnt_hi_u32_b32 v2, -1, v2
  v_lshrrev_b32 v3, 4, v2
  v_and_b32 v4, 15, v2""")
    g(f"""  v_lshrrev_b32 v5, 3, v2
  v_mul_u32_u24 v5, 1152, v5
  v_and_b32 v6, 7, v2
  v_xor_b32 v6, v6, v3
  v_lshl_add_u32 {v(XD(0))}, v6, 4, v5
  v_xor_b32 v6, 4, v6
  v_lshl_add_u32 v7, v6, 4, v5""")
    for p in range(1, 6):
        src_ = "v7" if p & 1 else v(XD(0))
        g(f"  v_add_u32 {v(XD(p))}, {p*9216 - (p&3)*1024}, {src_}")
    g(f"""  v_lshlrev_b32 v5, 2, v3
  v_xor_b32 v5, v5, v4
  v_lshlrev_b32 v5, 4, v5
  v_lshl_add_u32 {v(WD(0))}, v3, 13, v5""")
    for p in range(1, 4):
        g(f"  v_add_u32 {v(WD(p))}, {p*(4*8192-1024)}, {v(WD(0))}")
    g(f"""  s_mul_i32 {s(S_XM)}, s3, 6144
  s_mul_i32 {s(S_XSO)}, s3, {48*1152}
  s_lshl_b32 {s(S_WM)}, s3, 12
  s_add_u32 {s(S_WM)}, {s(S_WM)}, 24576
  s_lshl_b32 {s(S_WSO)}, s3, 17
  s_lshl_b32 {s(S_M0B)}, s3, 12""")
    ra, rb = cfg.get("rotab", (2, 1))
    g(f"""  s_and_b32 s44, {s(S_B)}, 3
  s_mul_i32 s44, s44, {ra}
  s_and_b32 s45, {s(S_H)}, 7
  s_mul_i32 s45, s45, {rb}
  s_add_u32 s44, s44, s45
  s_sub_u32 s45, s44, 9
  s_cmp_ge_u32 s44, 9
  s_cselect_b32 {s(S_J)}, s45, s44""")
    g(f"""  s_and_b32 s44, {s(S_B)}, 3
  s_lshl_b32 s44, s44, 2
  s_add_u32 s44, s44, s3
  s_add_u32 s44, s44, 2
  s_lshl_b32 s44, s44, 18
  v_lshrrev_b32 v5, 1, v2
  v_lshlrev_b32 v5, 13, v5
  v_and_b32 v6, 1, v2
  v_lshl_add_u32 v5, v6, 7, v5
  v_add_u32 {v(TD(0))}, s44, v5
  s_and_b32 s44, {s(S_H)}, 7
  s_lshl_b32 s44, s44, 2
  s_add_u32 s44, s44, s3
  s_mul_i32 s44, s44, {6*1152}
  s_add_u32 s44, s44, 128
  v_lshrrev_b32 v5, 3, v2
  v_mul_u32_u24 v5, 1152, v5
  v_and_b32 v6, 7, v2
  v_lshl_add_u32 v5, v6, 7, v5
  v_add_u32 {v(TD(1))}, s44, v5""")
    for p in range(4):
        g(f"""  v_add_u32 v7, {4*p}, v3
  v_xor_b32 v7, v7, v4
  v_lshlrev_b32 v7, 4, v7
  v_lshl_add_u32 {v(VKD+p)}, v3, 8, v7""")
    for p in range(2):
        g(f"""  v_add_u32 v7, {4*p}, v3
  v_lshlrev_b32 v7, 1, v7
  v_xor_b32 v7, v7, v4
  v_lshlrev_b32 v7, 4, v7
  v_lshl_add_u32 {v(VVD+p)}, v3, 8, v7""")

    def setup(g):
        g("  v_lshrrev_b32 v9, 2, v4\n  v_and_b32 v10, 3, v4")
        g(f"""  v_lshlrev_b32 v11, 2, v9
  v_xor_b32 v11, v11, v10
  v_lshlrev_b32 v11, 4, v11
  v_lshl_add_u32 v12, v3, 3, v9
  v_lshl_add_u32 v11, v12, 8, v11
  s_lshl_b32 s45, {s(S_KH)}, 7
  v_xor_b32 v11, s45, v11""")
        for sl in range(2):
            g(f"  v_xor_b32 v12, {sl*64}, v11\n  v_add_u32 {v(WA(0,sl))}, 24576, v12\n  v_add_u32 {v(WA(1,sl))}, {24576 + BB[2]}, v12")
        g(f"""  v_lshrrev_b32 v11, 1, v4
  v_xor_b32 v11, v11, v3
  v_lshlrev_b32 v11, 4, v11
  v_lshl_add_u32 v11, v4, 7, v11
  s_mul_i32 s44, {s(S_RG)}, {96*128}
  v_add_u32 v11, s44, v11
  v_mov_b32 {v(XA(0,0))}, v11
  v_xor_b32 {v(XA(0,1))}, 64, v11
  v_add_u32 {v(XA(1,0))}, {BB[2]}, {v(XA(0,0))}
  v_add_u32 {v(XA(1,1))}, {BB[2]}, {v(XA(0,1))}""")
        g(f"""  s_lshl_b32 s44, {s(S_KH)}, 13
  v_xor_b32 v8, v3, v4
  v_lshlrev_b32 v8, 4, v8
  v_lshl_add_u32 v8, v4, 8, v8
  v_xor_b32 v8, s45, v8
  v_add_u32 v8, s44, v8""")
        for ks in range(4):
            g(f"  v_xor_b32 {v(VKA+ks)}, {ks*64}, v8")
            g(f"  v_add_u32 {v(VKA+4+ks)}, 0x10000, {v(VKA+ks)}")
        g(f"""  v_and_b32 v11, 1, v3
  v_lshl_add_u32 v11, v11, 2, v9
  v_lshlrev_b32 v11, 1, v11
  v_lshrrev_b32 v12, 1, v10
  v_xor_b32 v11, v11, v12
  v_lshlrev_b32 v11, 4, v11
  v_and_b32 v12, 1, v10
  v_lshl_add_u32 v11, v12, 3, v11
  v_lshl_add_u32 v12, v3, 2, v9
  v_lshl_add_u32 v11, v12, 8, v11
  v_add_u32 v11, s44, v11
  v_add_u32 v11, 16384, v11""")
        for dt in range(8):
            g(f"  v_xor_b32 {v(VVA+dt)}, {dt*32}, v11")
            g(f"  v_add_u32 {v(VVA+8+dt)}, 0x10000, {v(VVA+dt)}")
        g(f"""  v_cmp_eq_u32 vcc, 0, v10
  v_mov_b32 v12, 0x3f803f80
  v_cndmask_b32 {v(VONE)}, 0, v12, vcc
  v_mov_b32 {v(VONE+1)}, {v(VONE)}
  v_mov_b32 {v(VONE+2)}, {v(VONE)}
  v_mov_b32 {v(VONE+3)}, {v(VONE)}""")
        sc = f2u(math.log2(math.e) / math.sqrt(128.0))
        g(f"""  v_lshlrev_b32 {v(VL16)}, 4, v2
  s_mul_i32 s44, s3, 12288
  s_add_u32 s44, s44, {WB}
  v_add_u32 {v(EXW)}, s44, {v(VL16)}
  s_xor_b32 s45, s3, 2
  s_mul_i32 s44, s45, 12288
  s_add_u32 s44, s44, {WB}
  v_add_u32 {v(EXR)}, s44, {v(VL16)}
  s_mov_b32 {s(S_SC)}, {hex(sc)}
  s_mov_b32 {s(S_SC+1)}, {hex(sc)}
  s_add_u32 {s(S_KOFF)}, {s(S_M0B)}, {4*16384}
  s_add_u32 {s(S_VOFF)}, {s(S_M0B)}, {3*16384}""")
    cfg["_setup"] = setup
    qproj(g)
    g.stamp(1)
    g.cstamp(5)
    g(f"  s_cmp_eq_u32 {s(S_PASS)}, 0\n  s_cbranch_scc0 L_maxpass")
    for ks in range(4):
        for kt in range(2):
            g("  " + kread(kt, ks, 3))
    for i in range(24): g(f"  v_mov_b32 {v(VL+i)}, 0")
    for i in range(8): g(f"  v_mov_b32 {v(P(1)+i)}, 0")
    g("  s_waitcnt lgkmcnt(0)")
    for ks in range(4):
        for qt in range(6):
            c = "0" if ks == 0 else v(NM(qt), 4)
            g(f"  {MF} {v(NM(qt),4)}, {a(KF(0,ks),4)}, {v(Q(qt,ks),4)}, {c}")
    g("  s_nop 7")
    def rowmax_finish():
        for qt in range(6): g(f"  v_mov_b32 {v(NM(qt)+1)}, {v(NM(qt))}")
        g("  s_nop 1")
        for qt in range(6): g(f"  v_permlane32_swap_b32 {v(NM(qt))}, {v(NM(qt)+1)}")
        g("  s_nop 1")
        for qt in range(6): g(f"  v_max_f32 {v(NM(qt))}, {v(NM(qt))}, {v(NM(qt)+1)}")
        for qt in range(6): g(f"  v_mov_b32 {v(NM(qt)+1)}, {v(NM(qt))}")
        g("  s_nop 1")
        for qt in range(6): g(f"  v_permlane16_swap_b32 {v(NM(qt))}, {v(NM(qt)+1)}")
        g("  s_nop 1")
        for qt in range(6): g(f"  v_max_f32 {v(NM(qt))}, {v(NM(qt))}, {v(NM(qt)+1)}")
        for qt in range(6):
            g(f"  v_sub_f32 {v(NM(qt))}, 0, {v(NM(qt))}")
        for qt in range(6):
            for r in range(1, 4): g(f"  v_mov_b32 {v(NM(qt)+r)}, {v(NM(qt))}")
    for qt in range(6):
        g(f"  v_max3_f32 {v(NM(qt))}, {v(NM(qt))}, {v(NM(qt)+1)}, {v(NM(qt)+2)}")
    for qt in range(6):
        g(f"  v_max_f32 {v(NM(qt))}, {v(NM(qt))}, {v(NM(qt)+3)}")
    rowmax_finish()
    g.label("L_join")
    g.tstamp(26)
    g("  s_nop 1")
    for m in qk_mfmas(0, 0): g("  " + m)
    g(f"  s_mov_b32 {s(S_CNT)}, 0")
    g.label("L_loop")
    for t in range(4):
        g(f"  s_waitcnt vmcnt({cfg.get('vm',16)})")
        g("  s_barrier")
        if cfg.get("trace"):
            g("  s_memrealtime s[76:77]\n  s_memtime s[80:81]")
            g(f"  s_lshl_b32 s78, {s(S_CNT)}, 2\n  s_add_u32 s78, s78, {t}")
        for j in range(3):
            stage(g, t, j)
    g(f"  s_add_u32 {s(S_CNT)}, {s(S_CNT)}, 1\n  s_cmp_lt_u32 {s(S_CNT)}, 8\n  s_cbranch_scc1 L_loop")
    for m in pv_mfmas(2, 1): g("  " + m)
    g.stamp(2)
    g.cstamp(6)
    g(f"""  v_lshrrev_b32 {v(VX)}, 2, {v(VL16)}
  s_mul_i32 s44, s3, 3072
  s_add_u32 s44, s44, {STATS}
  v_add_u32 {v(VX+1)}, s44, {v(VX)}
  s_xor_b32 s45, s3, 2
  s_mul_i32 s44, s45, 3072
  s_add_u32 s44, s44, {STATS}
  v_add_u32 {v(VX+2)}, s44, {v(VX)}
  s_nop 4""")
    for qt in range(6):
        g(f"  ds_write_b32 {v(VX+1)}, {v(NM(qt))} offset:{qt*512}")
        g(f"  ds_write_b32 {v(VX+1)}, {v(L(qt))} offset:{qt*512+256}")
    g("  s_waitcnt vmcnt(0) lgkmcnt(0)\n  s_barrier")
    for qt in range(6):
        g(f"  ds_read_b32 {v(S(0)+2*qt)}, {v(VX+2)} offset:{qt*512}")
        g(f"  ds_read_b32 {v(S(0)+2*qt+1)}, {v(VX+2)} offset:{qt*512+256}")
    if cfg.get("wopf", 1):
        g(f"""  s_mov_b32 {s(SWO)}, {s(S_WOP)}
  s_and_b32 {s(SWO+1)}, {s(S_WOP+1)}, 0xffff
  s_mov_b32 {s(SWO+2)}, {4096*1152}
  s_mov_b32 {s(SWO+3)}, 0x20000
  s_mul_i32 s44, s2, 18432
  s_mul_i32 s45, s3, 4608
  s_add_u32 s44, s44, s45""")
        for i in range(5):
            g(f"  buffer_load_dwordx4 {v(VX+24,4)}, {v(VL16)}, {s(SWO,4)}, s44 offen offset:{min(1024*i, 3584)}")
    g(f"""  s_mul_i32 s44, s3, 24576
  v_add_u32 {v(VX+8)}, s44, {v(VL16)}
  s_xor_b32 s45, s3, 2
  s_mul_i32 s44, s45, 24576
  v_add_u32 {v(VX+9)}, s44, {v(VL16)}
  s_mul_i32 s44, {s(S_RG)}, 6
  s_mul_i32 s45, {s(S_B)}, 12
  s_add_u32 s44, s44, s45
  s_lshl_b32 s44, s44, 5
  s_add_u32 s44, s44, {s(S_H)}
  s_lshl_b32 {s(S_T2)}, s44, 12
  s_mov_b32 s24, s32
  s_and_b32 s25, s33, 0xffff
  s_mov_b32 s26, {8*12*128*1024}
  s_mov_b32 s27, 0x20000
  s_waitcnt lgkmcnt(0)""")
    LS = VX + 6
    g(f"  v_add_f32 {v(LS)}, {v(L(0))}, {v(L(1))}")
    for qt in range(2, 6): g(f"  v_add_f32 {v(LS)}, {v(LS)}, {v(L(qt))}")
    for qt in range(6):
        nmo, nmp, lp = NM(qt), S(0) + 2 * qt, S(0) + 2 * qt + 1
        t, fo, fp = VX + 3, VX + 4, VX + 5
        go, gp = S(0) + 0, 0
        g(f"""  v_min_f32 {v(t)}, {v(nmo)}, {v(nmp)}
  v_sub_f32 {v(fo)}, {v(t)}, {v(nmo)}
  v_sub_f32 {v(fp)}, {v(t)}, {v(nmp)}
  v_exp_f32 {v(fo)}, {v(fo)}
  v_exp_f32 {v(fp)}, {v(fp)}
  s_nop 0
  v_mul_f32 {v(t)}, {v(L(qt))}, {v(fo)}
  v_fma_f32 {v(t)}, {v(lp)}, {v(fp)}, {v(t)}
  v_rcp_f32 {v(t)}, {v(t)}
  s_nop 0
  v_mul_f32 {v(NM(qt))}, {v(fo)}, {v(t)}
  v_mul_f32 {v(NM(qt)+2)}, {v(fp)}, {v(t)}""")
    for qt in range(6):
        go, gp = 96 + 4 * qt, 96 + 4 * qt + 2
        g(f"""  v_mov_b32 {v(go)}, {v(NM(qt))}
  v_mov_b32 {v(go+1)}, {v(NM(qt))}
  v_mov_b32 {v(gp)}, {v(NM(qt)+2)}
  v_mov_b32 {v(gp+1)}, {v(NM(qt)+2)}""")
    g(f"  s_cmp_eq_u32 {s(S_KH)}, 0\n  s_cbranch_scc0 L_ep1")
    epilogue_variant(g, 0)
    g("  s_branch L_ep_done")
    g.label("L_ep1")
    epilogue_variant(g, 1)
    g.label("L_ep_done")
    CH = VX + 10
    g(f"""  v_add_f32 {v(CH)}, {v(CH)}, {v(CH+1)}
  v_sub_f32 {v(CH)}, {v(CH)}, {v(CH)}
  v_cmp_u_f32 vcc, {v(CH)}, {v(CH)}
  s_mov_b64 s[46:47], vcc
  v_mov_b32 {v(CH+1)}, {hex(f2u(LTHR))}
  v_cmp_nle_f32 vcc, {v(LS)}, {v(CH+1)}
  s_or_b64 s[46:47], s[46:47], vcc
  s_cmp_lg_u64 s[46:47], 0
  s_cselect_b32 s44, 1, 0
  s_lshl_b32 s45, s3, 2
  s_add_u32 s45, s45, {FLAGS}
  v_mov_b32 {v(CH)}, s44
  v_mov_b32 {v(CH+1)}, s45
  ds_write_b32 {v(CH+1)}, {v(CH)}
  s_waitcnt lgkmcnt(0)
  s_barrier
  v_mov_b32 {v(CH+1)}, {FLAGS}
  ds_read_b128 {v(VX+12,4)}, {v(CH+1)}
  s_waitcnt lgkmcnt(0)
  v_or3_b32 {v(CH)}, {v(VX+12)}, {v(VX+13)}, {v(VX+14)}
  v_or_b32 {v(CH)}, {v(CH)}, {v(VX+15)}
  s_nop 0
  v_readfirstlane_b32 s44, {v(CH)}
  s_xor_b32 s45, {s(S_PASS)}, 1
  s_and_b32 s44, s44, s45
  s_cmp_lg_u32 s44, 0
  s_cbranch_scc1 L_fallback""")
    g("  s_waitcnt vmcnt(0)")
    if cfg.get("stamps"):
        g.stamp(7)
        g(f"""  s_add_u32 s30, s32, {hex(STAMP_OFF)}
  s_addc_u32 s31, s33, 0
  s_lshl_b32 s44, s2, 6
  s_add_u32 s30, s30, s44
  s_addc_u32 s31, s31, 0
  v_mov_b32 v24, 0
  s_cmp_eq_u32 s3, {cfg.get("stampwave", 0)}
  s_cbranch_scc0 L_k1_end
  v_cmp_eq_u32 vcc, 0, {v(VL16)}
  s_and_saveexec_b64 s[46:47], vcc
  s_cbranch_execz L_k1_end""")
        for i in (0, 1, 2, 3, 5, 6, 7):
            g(f"  v_mov_b32 v20, {s(S_STAMP+2*i)}\n  v_mov_b32 v21, {s(S_STAMP+2*i+1)}\n  global_store_dwordx2 v24, v[20:21], s[30:31] offset:{8*i}\n  s_nop 1")
        g("  s_waitcnt vmcnt(0)")
        if cfg.get("trace") or cfg.get("qtrace"):
            g(f"""  s_mov_b64 exec, -1
  s_add_u32 s30, s32, {hex(STAMP_OFF - 0xc000)}
  s_addc_u32 s31, s33, 0
  s_lshl_b32 s44, s2, 7
  s_add_u32 s30, s30, s44
  s_addc_u32 s31, s31, 0
  v_lshrrev_b32 v24, 2, {v(VL16)}
  v_cmp_gt_u32 vcc, 128, v24
  s_and_saveexec_b64 s[46:47], vcc
  global_store_dword v24, v250, s[30:31]
  s_sub_u32 s30, s30, 0x8000
  s_subb_u32 s31, s31, 0
  global_store_dword v24, v251, s[30:31]
  s_waitcnt vmcnt(0)""")
    g.label("L_k1_end")
    g("  s_endpgm")
    g.label("L_fallback")
    g(f"""  s_waitcnt vmcnt(0) lgkmcnt(0)
  s_mov_b32 {s(S_PASS)}, 1
  s_barrier
  s_branch L_restart""")
    g.label("L_maxpass")
    for i in range(24): g(f"  v_mov_b32 {v(VL+i)}, 0")
    for i in range(8): g(f"  v_mov_b32 {v(P(1)+i)}, 0")
    for qt in range(6): g(f"  v_mov_b32 {v(NM(qt))}, 0xff800000")
    g(f"""  s_mov_b32 {s(S_CNT)}, 0
  s_mov_b32 {s(S_T1)}, {s(S_M0B)}
  s_waitcnt vmcnt(0) lgkmcnt(0)
  s_barrier""")
    g.label("L_mp_loop")
    g(f"  s_add_u32 m0, {s(S_M0B)}, {3*SLOT}\n  s_nop 0")
    for p in range(4):
        g(f"  buffer_load_dwordx4 {v(VKD+p)}, {s(SK,4)}, {s(S_T1)} offen offset:{1024*p} lds")
    g("  s_waitcnt vmcnt(0)\n  s_barrier")
    for ks in range(4):
        for kt in range(2):
            g("  " + kread(kt, ks, 3))
    g("  s_waitcnt lgkmcnt(0)\n  s_barrier")
    for j in range(3):
        for m in qk_mfmas(j, 0, czero=True): g("  " + m)
        g("  s_nop 7")
        for qi in range(2):
            qt = 2 * j + qi
            for kt in range(2):
                b = S(0, kt, qi)
                g(f"  v_max3_f32 {v(NM(qt))}, {v(NM(qt))}, {v(b)}, {v(b+1)}")
                g(f"  v_max3_f32 {v(NM(qt))}, {v(NM(qt))}, {v(b+2)}, {v(b+3)}")
        g("  s_nop 1")
    g(f"""  s_add_u32 {s(S_T1)}, {s(S_T1)}, 16384
  s_add_u32 {s(S_CNT)}, {s(S_CNT)}, 1
  s_cmp_lt_u32 {s(S_CNT)}, 32
  s_cbranch_scc1 L_mp_loop""")
    rowmax_finish()
    g(f"  s_add_u32 m0, {s(S_M0B)}, {3*SLOT}\n  s_nop 0")
    for p in range(4):
        g(f"  buffer_load_dwordx4 {v(VKD+p)}, {s(SK,4)}, {s(S_M0B)} offen offset:{1024*p} lds")
    g("  s_waitcnt vmcnt(0)\n  s_barrier")
    for ks in range(4):
        for kt in range(2):
            g("  " + kread(kt, ks, 3))
    g("  s_waitcnt lgkmcnt(0)\n  s_branch L_join")

def gen_k2(g):
    cfg = g.cfg
    NPF = cfg.get("k2_depth", 6)
    RING = 8
    g(f".globl {K2}\n.p2align 8\n.type {K2},@function\n{K2}:")
    g("  s_cmp_ge_u32 s2, 216\n  s_cbranch_scc1 L_k2_end")
    g("  s_load_dwordx4 s[4:7], s[0:1], 32\n  s_load_dwordx2 s[32:33], s[0:1], 56")
    if cfg.get("stamps"): g(f"  s_memrealtime {s(S_STAMP,2)}")
    g("""  v_lshrrev_b32 v1, 6, v0
  v_and_b32 v2, 63, v0
  s_and_b32 s34, s2, 7                 ; b
  v_readfirstlane_b32 s3, v1
  s_lshr_b32 s35, s2, 3                ; qp*9+nt
  s_mul_i32 s36, s35, 57
  s_lshr_b32 s36, s36, 9               ; qp
  s_mul_i32 s37, s36, 9
  s_sub_u32 s37, s35, s37              ; nt
  v_lshrrev_b32 v3, 4, v2
  v_and_b32 v4, 15, v2
  v_lshlrev_b32 v10, 4, v2""")
    g("""  v_lshrrev_b32 v7, 3, v2
  v_and_b32 v8, 7, v2
  v_lshrrev_b32 v9, 1, v7
  v_and_b32 v9, 3, v9
  v_lshlrev_b32 v9, 1, v9
  v_xor_b32 v8, v8, v9
  v_lshlrev_b32 v8, 4, v8
  v_mul_u32_u24 v7, 1152, v7
  v_add_u32 v11, v7, v8
  v_add_u32 v12, 8192, v11
  v_add_u32 v13, 16384, v11
  v_add_u32 v14, 24576, v11""")
    g("""  s_mul_i32 s44, s34, 12
  s_lshl_b32 s45, s36, 2
  s_add_u32 s44, s44, s45
  s_lshl_b32 s44, s44, 17
  s_lshl_b32 s45, s3, 15
  s_add_u32 s38, s44, s45""")
    g(f"  s_mul_i32 s40, s3, {1024*1152}")
    g("  s_lshl_b32 s41, s3, 15")
    g("  s_waitcnt lgkmcnt(0)")
    g(f"""  s_lshl_b32 s44, s37, 7
  s_add_u32 s8, s4, s44
  s_addc_u32 s9, s5, 0
  s_and_b32 s9, s9, 0xffff
  s_sub_u32 s10, {4096*1152}, s44
  s_mov_b32 s11, 0x20000
  s_mov_b32 s12, s32
  s_and_b32 s13, s33, 0xffff
  s_mov_b32 s14, {8*12*128*1024}
  s_mov_b32 s15, 0x20000
  s_mov_b32 s16, s6
  s_and_b32 s17, s7, 0xffff
  s_mov_b32 s18, {8*192*1152}
  s_mov_b32 s19, 0x20000""")
    ACC = lambda mt, nt: 32 + (mt * 4 + nt) * 4
    NB = NPF + 1
    BF = lambda k, nt: 96 + ((k % NB) * 4 + nt) * 4
    AFB = 96 + NB * 16
    AF = lambda k, mt: AFB + ((k & 1) * 4 + mt) * 4
    assert AFB + 32 <= 256
    def issue(k):
        L_ = []
        L_.append(f"s_add_u32 m0, s41, {(k % RING)*4096}")
        L_.append(f"s_add_u32 s44, s40, {k*32*1152}")
        for p in range(4):
            L_.append(f"buffer_load_dwordx4 {v(11+p)}, s[8:11], s44 offen offset:{1024*p} lds")
        for nt in range(4):
            L_.append(f"s_add_u32 s45, s38, {nt*131072 + k*1024}")
            L_.append(f"buffer_load_dwordx4 {v(BF(k,nt),4)}, v10, s[12:15], s45 offen")
        return L_
    def areads(k):
        L_ = []
        for mt in range(4):
            for half in range(2):
                L_.append(f"ds_read_b64_tr_b16 {v(AF(k,mt)+2*half,2)}, {v(16+mt)} offset:{(k%RING)*4096 + half*2048}")
        return L_
    assert NPF + 1 <= RING
    for k in range(NPF):
        for ins in issue(k): g("  " + ins)
    g("""  v_lshrrev_b32 v7, 2, v4             ; r
  v_and_b32 v8, 3, v4                  ; c
  v_lshl_add_u32 v9, v3, 2, v7         ; row = 4g+r
  v_lshrrev_b32 v5, 1, v9
  v_and_b32 v5, 3, v5
  v_lshlrev_b32 v5, 1, v5
  v_lshrrev_b32 v6, 1, v8
  v_xor_b32 v5, v5, v6
  v_lshlrev_b32 v5, 4, v5
  v_and_b32 v6, 1, v8
  v_lshl_add_u32 v5, v6, 3, v5
  v_lshl_add_u32 v5, v9, 7, v5
  v_add_u32 v16, s41, v5
  v_xor_b32 v17, 32, v16
  v_xor_b32 v18, 64, v16
  v_xor_b32 v19, 96, v16""")
    g(f"  s_waitcnt vmcnt({8*(NPF-1)})")
    for ins in areads(0): g("  " + ins)
    NK = 32
    for k in range(NK):
        nxt = issue(k + NPF) if k + NPF < NK else []
        outstanding_after = min(NK, k + NPF + 1) - (k + 2)
        mf = []
        for mt in range(4):
            for nt in range(4):
                c = "0" if k == 0 else v(ACC(mt, nt), 4)
                mf.append(f"{MF} {v(ACC(mt,nt),4)}, {v(AF(k,mt),4)}, {v(BF(k,nt),4)}, {c}")
        g("  s_waitcnt lgkmcnt(0)")
        spread(g, mf[:8], nxt)
        if k + 1 < NK:
            g(f"  s_waitcnt vmcnt({8*max(0,outstanding_after)})")
            spread(g, mf[8:], areads(k + 1))
        else:
            spread(g, mf[8:], [])
    g.stamp(2)
    PITCH = 272
    g("  s_nop 7\n  s_barrier")
    g(f"""  v_mul_u32_u24 v7, {PITCH}, v4
  v_lshl_add_u32 v7, v3, 4, v7
  s_mul_i32 s45, s3, {64*PITCH}
  v_add_u32 v7, s45, v7""")
    for mt in range(4):
        for nt in range(4):
            g(f"  ds_write_b128 v7, {v(ACC(mt,nt),4)} offset:{nt*16*PITCH + mt*64}")
    g("  s_waitcnt lgkmcnt(0)\n  s_barrier")
    g(f"""  v_lshrrev_b32 v7, 3, v0
  v_and_b32 v8, 7, v0
  v_mul_u32_u24 v9, {PITCH}, v7
  v_lshl_add_u32 v9, v8, 5, v9""")
    for i in range(2):
        for w in range(4):
            for hq in range(2):
                g(f"  ds_read_b128 {v(96 + ((i*4+w)*2+hq)*4, 4)}, v9 offset:{i*32*PITCH + w*64*PITCH + hq*16}")
    g(f"""  s_mul_i32 s45, s34, 192
  s_lshl_b32 s46, s36, 6
  s_add_u32 s45, s45, s46
  s_mul_i32 s45, s45, 1152
  s_lshl_b32 s46, s37, 7
  s_add_u32 s45, s45, s46
  v_mul_u32_u24 v7, 1152, v7
  v_lshl_add_u32 v7, v8, 4, v7""")
    for i in range(2):
        g(f"  s_waitcnt lgkmcnt({8 if i == 0 else 0})")
        b0 = 96 + i * 32
        for w in range(1, 4):
            for e in range(0, 8, 2):
                g(f"  v_pk_add_f32 {v(b0+e,2)}, {v(b0+e,2)}, {v(b0+w*8+e,2)}")
        for e in range(4):
            g(f"  v_cvt_pk_bf16_f32 {v(b0+e)}, {v(b0+2*e)}, {v(b0+2*e+1)}")
        g(f"  s_add_u32 s46, s45, {i*32*1152}")
        g(f"  buffer_store_dwordx4 {v(b0,4)}, v7, s[16:19], s46 offen")
    g("  s_waitcnt vmcnt(0)")
    if cfg.get("stamps"):
        g.stamp(7)
        g(f"""  s_add_u32 s30, s32, {hex(STAMP_OFF - 0x4000)}
  s_addc_u32 s31, s33, 0
  s_lshl_b32 s44, s2, 6
  s_add_u32 s30, s30, s44
  s_addc_u32 s31, s31, 0
  v_mov_b32 v24, 0
  v_cmp_eq_u32 vcc, 0, v0
  s_and_saveexec_b64 s[46:47], vcc
  s_cbranch_execz L_k2_end""")
        for i in (0, 2, 7):
            g(f"  v_mov_b32 v20, {s(S_STAMP+2*i)}\n  v_mov_b32 v21, {s(S_STAMP+2*i+1)}\n  global_store_dwordx2 v24, v[20:21], s[30:31] offset:{8*i}\n  s_nop 1")
        g("  s_waitcnt vmcnt(0)")
    g.label("L_k2_end")
    g("  s_endpgm")

def generate(cfg):
    g = Gen(cfg)
    g(HEADER.rstrip())
    if cfg.get("only") != 2:
        g(f"; @launch kernel={K1} grid=(256,1,1) block=(256,1,1) lds=163840")
    if cfg.get("only") != 1:
        g(f"; @launch kernel={K2} grid=(216,1,1) block=(256,1,1) lds=131072")
    g('.amdgcn_target "amdgcn-amd-amdhsa--gfx950"\n.text')
    gen_k1(g)
    gen_k2(g)
    g('.section .rodata,"a"\n.p2align 6')
    g(kernel_desc(K1, 512, 96, 256))
    g(".p2align 6")
    g(kernel_desc(K2, 256, 96, 256))
    return g.text()

if __name__ == "__main__":
    import json
    out = sys.argv[1]
    cfg = json.loads(sys.argv[2]) if len(sys.argv) > 2 else {}
    open(out, "w").write(generate(cfg))
```

```python
import sys, math, struct
from asmlib import *

def f2u(x): return struct.unpack("<I", struct.pack("<f", x))[0]
def v(b, n=1): return f"v{b}" if n == 1 else f"v[{b}:{b+n-1}]"
def a(b, n=1): return f"a{b}" if n == 1 else f"a[{b}:{b+n-1}]"
def s(b, n=1): return f"s{b}" if n == 1 else f"s[{b}:{b+n-1}]"
MF = "v_mfma_f32_16x16x32_bf16"

K1 = "attn_fused_kernel"
K2 = "outproj_kernel"

VQ = 0
VS = 96
VP = 128
VNM = 144
VL = 168
VONE = 192
VKA = 196
VVA = 204
VKD = 220
VVD = 224
VL16 = 226
VX = 228
AO = 0
AK = 192
AV = 224

def Q(qt, ks): return VQ + (qt * 4 + ks) * 4
def S(p, kt=0, qi=0): return VS + 16 * p + (kt * 2 + qi) * 4
def P(p, qi=0): return VP + 8 * p + 4 * qi
def NM(qt): return VNM + 4 * qt
def L(qt): return VL + 4 * qt
def O(qt, dt): return AO + (qt * 8 + dt) * 4
def KF(kt, ks): return AK + (ks * 2 + kt) * 4
def VF(dt): return AV + 4 * dt

SK, SV, SX, SW, SO = 8, 12, 16, 20, 24
S_B, S_H, S_RG, S_KH = 34, 35, 36, 37
S_KOFF, S_VOFF, S_CNT, S_PASS, S_M0B = 38, 39, 40, 41, 43
S_T0, S_T1, S_T2, S_T3 = 44, 45, 46, 47
S_SC = 48
S_WM, S_XM, S_XSO, S_WSO = 50, 51, 54, 55
S_J = 56
S_STAMP = 60
SWO = 84
S_WOP = 58

SLOT = 32768
WB = 114688
STATS = 131072
FLAGS = 163840 - 64
STAMP_OFF = 0x1fffc000
LTHR = 2.0 ** 40

class Gen(Asm):
    def __init__(self, cfg):
        super().__init__()
        self.cfg = cfg
    def stamp(self, i):
        if self.cfg.get("stamps"):
            self(f"  s_memrealtime {s(S_STAMP + 2*i, 2)}\n  s_waitcnt lgkmcnt(0)")
    def tstamp(self, i):
        if self.cfg.get("qtrace"):
            ins = "s_memtime" if self.cfg.get("qclk") else "s_memrealtime"
            self(f"  {ins} s[76:77]\n  s_waitcnt lgkmcnt(0)\n  v_writelane_b32 v250, s76, {i}")
    def cstamp(self, i):
        if self.cfg.get("stamps"):
            self(f"  s_memtime {s(S_STAMP + 2*i, 2)}\n  s_waitcnt lgkmcnt(0)")

class VM:
    def __init__(self): self.ops = []
    def issue(self, tag, n=1): self.ops += [tag] * n
    def wait_for(self, *tags):
        last = -1
        for i, t in enumerate(self.ops):
            if t in tags: last = i
        n = len(self.ops) - 1 - last
        return min(n, 63)

def spread(g, mfmas, extra, cap=2):
    n = len(mfmas)
    per = [[] for _ in range(n)]
    for idx, ins in enumerate(extra):
        per[min(n - 1, idx * n // max(1, len(extra)))].append(ins)
    for i in range(n):
        g("  " + mfmas[i])
        for ins in per[i]: g("  " + ins)

def dma_k(slot):
    L_ = [(f"s_add_u32 m0, {s(S_M0B)}, {slot*SLOT}", 4)]
    L_.append(("s_nop 0", 0))
    for p in range(4):
        L_.append((f"buffer_load_dwordx4 {v(VKD+p)}, {s(SK,4)}, {s(S_KOFF)} offen offset:{1024*p} nt lds", 4))
    L_.append((f"s_add_u32 {s(S_KOFF)}, {s(S_KOFF)}, 16384", 4))
    return L_
def dma_v(slot):
    L_ = [(f"s_add_u32 m0, {s(S_M0B)}, {slot*SLOT+16384}", 4)]
    L_.append(("s_nop 0", 0))
    for p in range(4):
        L_.append((f"buffer_load_dwordx4 {v(VVD+(p&1))}, {s(SV,4)}, {s(S_VOFF)} offen offset:{1024*p} nt lds", 4))
    L_.append((f"s_add_u32 {s(S_VOFF)}, {s(S_VOFF)}, 16384", 4))
    return L_

def kread(kt, ks, slot):
    base = VKA + (0 if slot < 2 else 4) + ks
    return f"ds_read_b128 {a(KF(kt,ks),4)}, {v(base)} offset:{(slot&1)*SLOT + kt*4096}"
def vread(dt, half, slot):
    base = VVA + (0 if slot < 2 else 8) + dt
    return f"ds_read_b64_tr_b16 {a(VF(dt)+2*half,2)}, {v(base)} offset:{(slot&1)*SLOT + half*4096}"

def qk_mfmas(j, sp, czero=False):
    L_ = []
    for ks in range(4):
        for kt in range(2):
            for qi in range(2):
                d = S(sp, kt, qi)
                c = (("0" if czero else v(NM(2*j+qi), 4)) if ks == 0 else v(d, 4))
                L_.append(f"{MF} {v(d,4)}, {a(KF(kt,ks),4)}, {v(Q(2*j+qi,ks),4)}, {c}")
    return L_
def pv_mfmas(j, pp):
    L_ = []
    for dt in range(8):
        for qi in range(2):
            d = O(2*j+qi, dt)
            L_.append(f"{MF} {a(d,4)}, {a(VF(dt),4)}, {v(P(pp,qi),4)}, {a(d,4)}")
    for qi in range(2):
        d = L(2*j+qi)
        L_.append(f"{MF} {v(d,4)}, {v(VONE,4)}, {v(P(pp,qi),4)}, {v(d,4)}")
    return L_

def softmax_items(p):
    exps = []; cvts = []
    for qi in range(2):
        for kt in range(2):
            for h in range(2):
                r0 = S(p, kt, qi) + 2 * h
                exps.append(f"v_exp_f32 {v(r0)}, {v(r0)}")
                exps.append(f"v_exp_f32 {v(r0+1)}, {v(r0+1)}")
                cvts.append((f"v_cvt_pk_bf16_f32 {v(P(p,qi)+2*kt+h)}, {v(r0)}, {v(r0+1)}", len(exps)))
    return exps, cvts

def stage(g, t, j):
    cfg = g.cfg
    u = 3 * t + j
    par = u & 1
    jn, jp = (j + 1) % 3, (j + 2) % 3
    slot = t & 3
    mf = qk_mfmas(jn, par ^ 1) + pv_mfmas(jp, par ^ 1)
    n = len(mf)
    fixed = {i: [] for i in range(n)}
    pre = []
    dslot = (slot + 3) & 3
    kpos = cfg.get("kdma", (0, 0)); vpos = cfg.get("vdma", (1, 24))
    def place(L_, start):
        grp = [L_[0:3]] + [[x] for x in L_[3:]]
        for i, x in enumerate(grp):
            fixed[min(n - 1, start + i)] += x
    if j == 0:
        for dt in range(8):
            fixed[16 + 2 * dt + 1] += [(vread(dt, 0, slot), 4), (vread(dt, 1, slot), 4)]
    elif j == 1:
        fixed[15] += [("s_waitcnt lgkmcnt(0)", 4)]
        i = 16
        for ks in range(4):
            for kt in range(2):
                fixed[i] += [(kread(kt, ks, slot), 4)]; i += 1
    elif j == 2:
        pre.append("s_waitcnt lgkmcnt(0)")
    if j == kpos[0]: place(dma_k(dslot), kpos[1])
    if j == vpos[0]: place(dma_v(dslot), vpos[1])
    if cfg.get("nodma"):
        fixed = {k: [x for x in L_ if not x[0].startswith("buffer_load")] for k, L_ in fixed.items()}
    exps, cvts = softmax_items(par)
    if cfg.get("nosm"): exps, cvts = [], []
    for ins in pre: g("  " + ins)
    if j == 2 and cfg.get("trace"):
        g("  s_mov_b32 s79, m0\n  s_mov_b32 m0, s78\n  s_nop 0\n  v_writelane_b32 v250, s76, m0\n  v_writelane_b32 v251, s80, m0\n  s_mov_b32 m0, s79\n  s_nop 0")
    ei = ci = 0
    for i in range(n):
        g("  " + mf[i])
        free = 8
        last_was_exp = False
        for ins, c in fixed[i]:
            g("  " + ins); free -= c
        emitted_e_at_start = ei
        while True:
            if ei < len(exps) and free >= 8:
                g("  " + exps[ei]); ei += 1; free -= 8; last_was_exp = True
            elif ci < len(cvts) and free >= 4 and cvts[ci][1] <= emitted_e_at_start and (ei == len(exps) or free < 8):
                g("  " + cvts[ci][0]); ci += 1; free -= 4
            else:
                break
        if i == n - 1:
            if ei < len(exps) or ci < len(cvts):
                while ei < len(exps):
                    g("  " + exps[ei]); ei += 1
                g("  s_nop 0")
                while ci < len(cvts):
                    g("  " + cvts[ci][0]); ci += 1

BB = (0, 40960, 114688)
XA = lambda hi, st: VX + hi * 2 + st
WA = lambda hi, sl: VX + 4 + hi * 2 + sl
XD = lambda p: VX + 8 + p
WD = lambda p: VX + 14 + p
TD = lambda i: VX + 18 + i
EXW, EXR = 252, 253
def qproj(g):
    cfg = g.cfg
    AF = lambda buf, mt: buf * 16 + mt * 4
    BF = lambda buf, qt: 32 + buf * 24 + qt * 4
    ACC = lambda mt, qt: 96 + (mt * 6 + qt) * 4
    xf = cfg.get("xflag", ""); wf = cfg.get("wflag", ""); tf = cfg.get("tflag", "")
    vm = VM()
    def sload(k):
        L_ = []
        bb = BB[k % 3]
        if cfg.get("rot", 1):
            if k > 0:
                L_.append(f"s_add_u32 {s(S_J)}, {s(S_J)}, 1")
                L_.append(f"s_cmp_eq_u32 {s(S_J)}, 9")
                L_.append(f"s_cselect_b32 {s(S_J)}, 0, {s(S_J)}")
            L_.append(f"s_lshl_b32 {s(S_T1)}, {s(S_J)}, 19")
            L_.append(f"s_add_u32 m0, {s(S_WM)}, {bb}")
            L_.append(f"s_add_u32 {s(S_T1)}, {s(S_T1)}, {s(S_WSO)}")
        else:
            L_.append(f"s_add_u32 m0, {s(S_WM)}, {bb}")
            L_.append(f"s_add_u32 {s(S_T1)}, {s(S_WSO)}, {k*64*8192}")
        for p in range(4):
            L_.append(f"buffer_load_dwordx4 {v(WD(p))}, {s(SW,4)}, {s(S_T1)} offen offset:{1024*p}{wf} lds")
        if cfg.get("rot", 1):
            L_.append(f"s_lshl_b32 {s(S_T0)}, {s(S_J)}, 7")
            L_.append(f"s_add_u32 m0, {s(S_XM)}, {bb}")
            L_.append(f"s_add_u32 {s(S_T0)}, {s(S_T0)}, {s(S_XSO)}")
        else:
            L_.append(f"s_add_u32 m0, {s(S_XM)}, {bb}")
            L_.append(f"s_add_u32 {s(S_T0)}, {s(S_XSO)}, {k*128}")
        for p in range(4):
            L_.append(f"buffer_load_dwordx4 {v(XD(p))}, {s(SX,4)}, {s(S_T0)} offen offset:{1024*p}{xf} lds")
        L_.append(f"s_add_u32 m0, {s(S_XM)}, {bb + 4096}")
        L_.append("s_nop 0")
        for p in range(4, 6):
            L_.append(f"buffer_load_dwordx4 {v(XD(p))}, {s(SX,4)}, {s(S_T0)} offen offset:{1024*(p-4)}{xf} lds")
        vm.issue(f"S{k}", 10)
        return L_
    def touch():
        L_ = []
        if cfg.get("ntouch", 0):
            L_.append(f"buffer_load_dword {v(248)}, {v(TD(0))}, {s(SW,4)}, 0 offen{tf}")
            L_.append(f"buffer_load_dword {v(249)}, {v(TD(1))}, {s(SX,4)}, 0 offen{tf}")
            vm.issue("T", 2)
        return L_
    def quad(tag, srd, isK, goff, loff):
        L_ = [f"s_add_u32 m0, {s(S_M0B)}, {loff}", f"s_add_u32 {s(S_T0)}, {s(S_M0B)}, {goff}"]
        for p in range(4):
            vo = VKD + p if isK else VVD + (p & 1)
            L_.append(f"buffer_load_dwordx4 {v(vo)}, {s(srd,4)}, {s(S_T0)} offen offset:{1024*p} nt lds")
        vm.issue(tag, 4)
        return L_
    def G(t):
        return quad(f"G{t}", SK, True, (t + 1) * 16384, t * SLOT) + quad(f"G{t}", SV, False, t * 16384, t * SLOT + 16384)
    K0 = lambda: quad("K0", SK, True, 0, 3 * SLOT)
    g.tstamp(1)
    k0pos = cfg.get("k0pos", 1)
    tpos = cfg.get("tpos", 0)
    pro = (touch() if tpos == 0 else []) + sload(0) + (touch() if tpos == 1 else [])
    if k0pos == 0: pro += K0()
    pro += sload(1)
    for ins in pro: g("  " + ins)
    g.tstamp(2)
    cfg["_setup"](g)
    later = {(0, 0): lambda: sload(2)}
    for k in range(6): later[(k, 1)] = (lambda k=k: sload(k + 3))
    if k0pos == 1:
        later[(5, 1)] = lambda: sload(8) + K0()
    gp = cfg.get("gpos", [[6, 1], [8, 1], None])
    post = []
    for t in range(3):
        if gp[t] is None:
            post.append(t)
        else:
            key = tuple(gp[t]); prev = later.get(key)
            later[key] = (lambda t=t, prev=prev: (prev() if prev else []) + G(t))
    def reads(k, step):
        L_ = []
        hi = 1 if k % 3 == 2 else 0
        bb = 0 if hi else BB[k % 3]
        buf = step
        for mt in range(4):
            sl, hf = mt >> 1, mt & 1
            for half in range(2):
                L_.append(f"ds_read_b64_tr_b16 {v(AF(buf,mt)+2*half,2)}, {v(WA(hi,sl))} offset:{bb + step*8192 + half*1024 + hf*8}")
            if mt == 0:
                for qt in range(6):
                    L_.append(f"ds_read_b128 {v(BF(buf,qt),4)}, {v(XA(hi,step))} offset:{bb + qt*2048}")
        return L_
    def mfmas(k, step):
        L_ = []
        st = 2 * k + step
        for mt in range(4):
            for qt in range(6):
                c = "0" if st == 0 else v(ACC(mt, qt), 4)
                L_.append(f"{MF} {v(ACC(mt,qt),4)}, {v(AF(step,mt),4)}, {v(BF(step,qt),4)}, {c}")
        return L_
    zl = [f"v_accvgpr_write_b32 {a(i)}, 0" for i in list(range(192)) + list(range(AV, AV + 32))]
    def zeros(n):
        r = zl[:n]; del zl[:n]
        return r
    def mix(*lists):
        tot = sum(len(x) for x in lists)
        out = []; idx = [0] * len(lists)
        for _ in range(tot):
            best = min((i for i in range(len(lists)) if idx[i] < len(lists[i])), key=lambda i: (idx[i] + 0.5) / len(lists[i]))
            out.append(lists[best][idx[best]]); idx[best] += 1
        return out
    def grp(L_):
        out = []; cur = []
        for ins in L_:
            cur.append(ins)
            if ins.startswith("buffer_load"):
                out.append("\n  ".join(cur)); cur = []
        if cur: out.append("\n  ".join(cur))
        return out
    def place(mf, rd, dm, zs):
        n = len(mf)
        per = [[] for _ in range(n)]; cost = [0] * n
        rstep = cfg.get("rstep", 1)
        for i, x in enumerate(rd):
            j = min(n - 1, i * rstep); per[j].append(x); cost[j] += 1
        for i, x in enumerate(dm):
            j = min(n - 1, (i * n) // max(1, len(dm)) + cfg.get("dshift", 0)); per[j].append(x); cost[j] += 1 + x.count("\n")
        for x in zs:
            j = min(range(n), key=lambda q: (cost[q], -q)); per[j].append(x); cost[j] += 1
        for i in range(n):
            g("  " + mf[i])
            for x in per[i]: g("  " + x)
    g(f"  s_waitcnt vmcnt({vm.wait_for('S0')})")
    g.tstamp(3)
    g("  s_barrier")
    g.tstamp(4)
    g.stamp(3)
    for ins in reads(0, 0): g("  " + ins)
    for k in range(9):
        g("  s_waitcnt lgkmcnt(0)")
        lat = later.get((k, 0))
        place(mfmas(k, 0), reads(k, 1), grp(lat()) if lat else [], zeros(25 if k < 8 else len(zl)))
        g("  s_waitcnt lgkmcnt(0)")
        if k < 8:
            g(f"  s_waitcnt vmcnt({vm.wait_for('S%d' % (k+1))})")
        g.tstamp(5 + 2 * k)
        g("  s_barrier")
        g.tstamp(6 + 2 * k)
        lat = later.get((k, 1))
        place(mfmas(k, 1), reads(k + 1, 0) if k < 8 else [], grp(lat()) if lat else [], [])
    assert not zl
    g.tstamp(23)
    g("  s_nop 7")
    for qt in range(6):
        for mt in range(4):
            ac = ACC(mt, qt)
            for i in (0, 2):
                g(f"  v_pk_mul_f32 {v(ac+i,2)}, {v(ac+i,2)}, {s(S_SC,2)}")
    for qt in range(6):
        for sl in range(2):
            q = Q(qt, sl)
            for hf in range(2):
                ac = ACC(2 * sl + hf, qt)
                for i in range(2):
                    g(f"  v_cvt_pk_bf16_f32 {v(q+2*hf+i)}, {v(ac+2*i)}, {v(ac+2*i+1)}")
            g(f"  ds_write_b128 {v(EXW)}, {v(q,4)} offset:{(qt*2+sl)*1024}")
    g(f"  s_waitcnt vmcnt({vm.wait_for('K0')}) lgkmcnt(0)")
    g.tstamp(24)
    g("  s_barrier")
    g.tstamp(25)
    for qt in range(6):
        for sl in range(2):
            g(f"  ds_read_b128 {v(Q(qt,2+sl),4)}, {v(EXR)} offset:{(qt*2+sl)*1024}")
    for t in post:
        for ins in G(t): g("  " + ins)

def epilogue_variant(g, kh):
    keep = [4 * kh + i for i in range(4)]; send = [4 * (1 - kh) + i for i in range(4)]
    for qt in range(6):
        for di, dt in enumerate(send):
            g(f"  ds_write_b128 {v(VX+8)}, {a(O(qt,dt),4)} offset:{(qt*4+di)*1024}")
    g("  s_waitcnt lgkmcnt(0)")
    g("  s_barrier")
    for qt in range(6):
        for di in range(4):
            g(f"  ds_read_b128 {v((qt*4+di)*4,4)}, {v(VX+9)} offset:{(qt*4+di)*1024}")
    CH = VX + 10
    g(f"  v_mov_b32 {v(CH)}, 0\n  v_mov_b32 {v(CH+1)}, 0")
    for qt in range(6):
        go, gp = 96 + 4 * qt, 96 + 4 * qt + 2
        ob = 120 + (qt & 1) * 16
        for di, dt in enumerate(keep):
            for r in range(4):
                g(f"  v_accvgpr_read_b32 {v(ob+4*di+r)}, {a(O(qt,dt)+r)}")
        rem = 24 - (qt + 1) * 4
        g(f"  s_waitcnt lgkmcnt({min(rem,15)})")
        pb = qt * 16
        for i in range(0, 16, 2):
            g(f"  v_pk_mul_f32 {v(pb+i,2)}, {v(pb+i,2)}, {v(gp,2)}")
        for i in range(0, 16, 2):
            g(f"  v_pk_fma_f32 {v(pb+i,2)}, {v(ob+i,2)}, {v(go,2)}, {v(pb+i,2)}")
        for i in range(8):
            g(f"  v_cvt_pk_bf16_f32 {v(ob+i)}, {v(pb+2*i)}, {v(pb+2*i+1)}")
        for sidx in range(2):
            off = qt * 32 * 4 * 1024 + (2 * kh + sidx) * 1024
            g(f"  s_add_u32 {s(S_T0)}, {s(S_T2)}, {off}")
            g(f"  buffer_store_dwordx4 {v(ob+4*sidx,4)}, {v(VL16)}, {s(SO,4)}, {s(S_T0)} offen{g.cfg.get('ostore',' sc1')}")
        for i in range(0, 16, 2):
            g(f"  v_pk_add_f32 {v(CH,2)}, {v(CH,2)}, {v(pb+i,2)}")

def gen_k1(g):
    cfg = g.cfg
    g(f".globl {K1}\n.p2align 8\n.type {K1},@function\n{K1}:")
    g("  s_cmp_ge_u32 s2, 256\n  s_cbranch_scc1 L_k1_end")
    g(f"  s_load_dwordx4 s[4:7], s[0:1], 0\n  s_load_dwordx4 s[28:31], s[0:1], 16\n  s_load_dwordx2 s[32:33], s[0:1], 56\n  s_load_dwordx2 {s(S_WOP,2)}, s[0:1], 32")
    if cfg.get("stamps"): g(f"  s_memrealtime {s(S_STAMP,2)}")
    if cfg.get("qtrace"): g("  v_mov_b32 v250, 0\n  v_mov_b32 v251, 0")
    g(f"  v_lshrrev_b32 v1, 6, v0\n  s_mov_b32 {s(S_PASS)}, 0\n  v_readfirstlane_b32 s3, v1")
    mm = cfg.get("map", 3)
    g("  s_and_b32 s44, s2, 7\n  s_lshr_b32 s45, s2, 3")
    if mm == 2:
        g(f"  s_mov_b32 {s(S_B)}, s44\n  s_mov_b32 {s(S_H)}, s45")
    elif mm == 3:
        g(f"""  s_and_b32 s46, s44, 1
  s_lshl_b32 s46, s46, 2
  s_and_b32 s47, s45, 3
  s_add_u32 {s(S_B)}, s46, s47
  s_lshr_b32 s46, s44, 1
  s_lshl_b32 s46, s46, 3
  s_lshr_b32 s47, s45, 2
  s_add_u32 {s(S_H)}, s46, s47""")
    elif mm == 0:
        g(f"  s_lshr_b32 {s(S_B)}, s2, 5\n  s_and_b32 {s(S_H)}, s2, 31")
    g(f"""  s_and_b32 {s(S_RG)}, s3, 1
  s_lshr_b32 {s(S_KH)}, s3, 1
  s_lshl_b32 s44, {s(S_B)}, 5
  s_add_u32 s44, s44, {s(S_H)}
  s_lshl_b32 s44, s44, 19
  s_mul_i32 s45, {s(S_B)}, 221184
  s_lshl_b32 s46, {s(S_H)}, 8
  s_waitcnt lgkmcnt(0)
  s_add_u32 s16, s4, s45
  s_addc_u32 s17, s5, 0
  s_and_b32 s17, s17, 0xffff
  s_mov_b32 s18, 221184
  s_mov_b32 s19, 0x20000
  s_add_u32 s20, s30, s46
  s_addc_u32 s21, s31, 0
  s_and_b32 s21, s21, 0xffff
  s_sub_u32 s22, {576*8192}, s46
  s_mov_b32 s23, 0x20000
  s_add_u32 s8, s6, s44
  s_addc_u32 s9, s7, 0
  s_and_b32 s9, s9, 0xffff
  s_mov_b32 s10, 0x80000
  s_mov_b32 s11, 0x20000
  s_add_u32 s12, s28, s44
  s_addc_u32 s13, s29, 0
  s_and_b32 s13, s13, 0xffff
  s_mov_b32 s14, 0x80000
  s_mov_b32 s15, 0x20000""")
    g.label("L_restart")
    g("""  v_mbcnt_lo_u32_b32 v2, -1, 0
  v_mbcnt_hi_u32_b32 v2, -1, v2
  v_lshrrev_b32 v3, 4, v2
  v_and_b32 v4, 15, v2""")
    g(f"""  v_lshrrev_b32 v5, 3, v2
  v_mul_u32_u24 v5, 1152, v5
  v_and_b32 v6, 7, v2
  v_xor_b32 v6, v6, v3
  v_lshl_add_u32 {v(XD(0))}, v6, 4, v5
  v_xor_b32 v6, 4, v6
  v_lshl_add_u32 v7, v6, 4, v5""")
    for p in range(1, 6):
        src_ = "v7" if p & 1 else v(XD(0))
        g(f"  v_add_u32 {v(XD(p))}, {p*9216 - (p&3)*1024}, {src_}")
    g(f"""  v_lshlrev_b32 v5, 2, v3
  v_xor_b32 v5, v5, v4
  v_lshlrev_b32 v5, 4, v5
  v_lshl_add_u32 {v(WD(0))}, v3, 13, v5""")
    for p in range(1, 4):
        g(f"  v_add_u32 {v(WD(p))}, {p*(4*8192-1024)}, {v(WD(0))}")
    g(f"""  s_mul_i32 {s(S_XM)}, s3, 6144
  s_mul_i32 {s(S_XSO)}, s3, {48*1152}
  s_lshl_b32 {s(S_WM)}, s3, 12
  s_add_u32 {s(S_WM)}, {s(S_WM)}, 24576
  s_lshl_b32 {s(S_WSO)}, s3, 17
  s_lshl_b32 {s(S_M0B)}, s3, 12""")
    ra, rb = cfg.get("rotab", (2, 1))
    g(f"""  s_and_b32 s44, {s(S_B)}, 3
  s_mul_i32 s44, s44, {ra}
  s_and_b32 s45, {s(S_H)}, 7
  s_mul_i32 s45, s45, {rb}
  s_add_u32 s44, s44, s45
  s_sub_u32 s45, s44, 9
  s_cmp_ge_u32 s44, 9
  s_cselect_b32 {s(S_J)}, s45, s44""")
    g(f"""  s_and_b32 s44, {s(S_B)}, 3
  s_lshl_b32 s44, s44, 2
  s_add_u32 s44, s44, s3
  s_add_u32 s44, s44, 2
  s_lshl_b32 s44, s44, 18
  v_lshrrev_b32 v5, 1, v2
  v_lshlrev_b32 v5, 13, v5
  v_and_b32 v6, 1, v2
  v_lshl_add_u32 v5, v6, 7, v5
  v_add_u32 {v(TD(0))}, s44, v5
  s_and_b32 s44, {s(S_H)}, 7
  s_lshl_b32 s44, s44, 2
  s_add_u32 s44, s44, s3
  s_mul_i32 s44, s44, {6*1152}
  s_add_u32 s44, s44, 128
  v_lshrrev_b32 v5, 3, v2
  v_mul_u32_u24 v5, 1152, v5
  v_and_b32 v6, 7, v2
  v_lshl_add_u32 v5, v6, 7, v5
  v_add_u32 {v(TD(1))}, s44, v5""")
    for p in range(4):
        g(f"""  v_add_u32 v7, {4*p}, v3
  v_xor_b32 v7, v7, v4
  v_lshlrev_b32 v7, 4, v7
  v_lshl_add_u32 {v(VKD+p)}, v3, 8, v7""")
    for p in range(2):
        g(f"""  v_add_u32 v7, {4*p}, v3
  v_lshlrev_b32 v7, 1, v7
  v_xor_b32 v7, v7, v4
  v_lshlrev_b32 v7, 4, v7
  v_lshl_add_u32 {v(VVD+p)}, v3, 8, v7""")

    def setup(g):
        g("  v_lshrrev_b32 v9, 2, v4\n  v_and_b32 v10, 3, v4")
        g(f"""  v_lshlrev_b32 v11, 2, v9
  v_xor_b32 v11, v11, v10
  v_lshlrev_b32 v11, 4, v11
  v_lshl_add_u32 v12, v3, 3, v9
  v_lshl_add_u32 v11, v12, 8, v11
  s_lshl_b32 s45, {s(S_KH)}, 7
  v_xor_b32 v11, s45, v11""")
        for sl in range(2):
            g(f"  v_xor_b32 v12, {sl*64}, v11\n  v_add_u32 {v(WA(0,sl))}, 24576, v12\n  v_add_u32 {v(WA(1,sl))}, {24576 + BB[2]}, v12")
        g(f"""  v_lshrrev_b32 v11, 1, v4
  v_xor_b32 v11, v11, v3
  v_lshlrev_b32 v11, 4, v11
  v_lshl_add_u32 v11, v4, 7, v11
  s_mul_i32 s44, {s(S_RG)}, {96*128}
  v_add_u32 v11, s44, v11
  v_mov_b32 {v(XA(0,0))}, v11
  v_xor_b32 {v(XA(0,1))}, 64, v11
  v_add_u32 {v(XA(1,0))}, {BB[2]}, {v(XA(0,0))}
  v_add_u32 {v(XA(1,1))}, {BB[2]}, {v(XA(0,1))}""")
        g(f"""  s_lshl_b32 s44, {s(S_KH)}, 13
  v_xor_b32 v8, v3, v4
  v_lshlrev_b32 v8, 4, v8
  v_lshl_add_u32 v8, v4, 8, v8
  v_xor_b32 v8, s45, v8
  v_add_u32 v8, s44, v8""")
        for ks in range(4):
            g(f"  v_xor_b32 {v(VKA+ks)}, {ks*64}, v8")
            g(f"  v_add_u32 {v(VKA+4+ks)}, 0x10000, {v(VKA+ks)}")
        g(f"""  v_and_b32 v11, 1, v3
  v_lshl_add_u32 v11, v11, 2, v9
  v_lshlrev_b32 v11, 1, v11
  v_lshrrev_b32 v12, 1, v10
  v_xor_b32 v11, v11, v12
  v_lshlrev_b32 v11, 4, v11
  v_and_b32 v12, 1, v10
  v_lshl_add_u32 v11, v12, 3, v11
  v_lshl_add_u32 v12, v3, 2, v9
  v_lshl_add_u32 v11, v12, 8, v11
  v_add_u32 v11, s44, v11
  v_add_u32 v11, 16384, v11""")
        for dt in range(8):
            g(f"  v_xor_b32 {v(VVA+dt)}, {dt*32}, v11")
            g(f"  v_add_u32 {v(VVA+8+dt)}, 0x10000, {v(VVA+dt)}")
        g(f"""  v_cmp_eq_u32 vcc, 0, v10
  v_mov_b32 v12, 0x3f803f80
  v_cndmask_b32 {v(VONE)}, 0, v12, vcc
  v_mov_b32 {v(VONE+1)}, {v(VONE)}
  v_mov_b32 {v(VONE+2)}, {v(VONE)}
  v_mov_b32 {v(VONE+3)}, {v(VONE)}""")
        sc = f2u(math.log2(math.e) / math.sqrt(128.0))
        g(f"""  v_lshlrev_b32 {v(VL16)}, 4, v2
  s_mul_i32 s44, s3, 12288
  s_add_u32 s44, s44, {WB}
  v_add_u32 {v(EXW)}, s44, {v(VL16)}
  s_xor_b32 s45, s3, 2
  s_mul_i32 s44, s45, 12288
  s_add_u32 s44, s44, {WB}
  v_add_u32 {v(EXR)}, s44, {v(VL16)}
  s_mov_b32 {s(S_SC)}, {hex(sc)}
  s_mov_b32 {s(S_SC+1)}, {hex(sc)}
  s_add_u32 {s(S_KOFF)}, {s(S_M0B)}, {4*16384}
  s_add_u32 {s(S_VOFF)}, {s(S_M0B)}, {3*16384}""")
    cfg["_setup"] = setup
    qproj(g)
    g.stamp(1)
    g.cstamp(5)
    g(f"  s_cmp_eq_u32 {s(S_PASS)}, 0\n  s_cbranch_scc0 L_maxpass")
    for ks in range(4):
        for kt in range(2):
            g("  " + kread(kt, ks, 3))
    for i in range(24): g(f"  v_mov_b32 {v(VL+i)}, 0")
    for i in range(8): g(f"  v_mov_b32 {v(P(1)+i)}, 0")
    g("  s_waitcnt lgkmcnt(0)")
    for ks in range(4):
        for qt in range(6):
            c = "0" if ks == 0 else v(NM(qt), 4)
            g(f"  {MF} {v(NM(qt),4)}, {a(KF(0,ks),4)}, {v(Q(qt,ks),4)}, {c}")
    g("  s_nop 7")
    def rowmax_finish():
        for qt in range(6): g(f"  v_mov_b32 {v(NM(qt)+1)}, {v(NM(qt))}")
        g("  s_nop 1")
        for qt in range(6): g(f"  v_permlane32_swap_b32 {v(NM(qt))}, {v(NM(qt)+1)}")
        g("  s_nop 1")
        for qt in range(6): g(f"  v_max_f32 {v(NM(qt))}, {v(NM(qt))}, {v(NM(qt)+1)}")
        for qt in range(6): g(f"  v_mov_b32 {v(NM(qt)+1)}, {v(NM(qt))}")
        g("  s_nop 1")
        for qt in range(6): g(f"  v_permlane16_swap_b32 {v(NM(qt))}, {v(NM(qt)+1)}")
        g("  s_nop 1")
        for qt in range(6): g(f"  v_max_f32 {v(NM(qt))}, {v(NM(qt))}, {v(NM(qt)+1)}")
        for qt in range(6):
            g(f"  v_sub_f32 {v(NM(qt))}, 0, {v(NM(qt))}")
        for qt in range(6):
            for r in range(1, 4): g(f"  v_mov_b32 {v(NM(qt)+r)}, {v(NM(qt))}")
    for qt in range(6):
        g(f"  v_max3_f32 {v(NM(qt))}, {v(NM(qt))}, {v(NM(qt)+1)}, {v(NM(qt)+2)}")
    for qt in range(6):
        g(f"  v_max_f32 {v(NM(qt))}, {v(NM(qt))}, {v(NM(qt)+3)}")
    rowmax_finish()
    g.label("L_join")
    g.tstamp(26)
    g("  s_nop 1")
    for m in qk_mfmas(0, 0): g("  " + m)
    g(f"  s_mov_b32 {s(S_CNT)}, 0")
    g.label("L_loop")
    for t in range(4):
        g(f"  s_waitcnt vmcnt({cfg.get('vm',16)})")
        g("  s_barrier")
        if cfg.get("trace"):
            g("  s_memrealtime s[76:77]\n  s_memtime s[80:81]")
            g(f"  s_lshl_b32 s78, {s(S_CNT)}, 2\n  s_add_u32 s78, s78, {t}")
        for j in range(3):
            stage(g, t, j)
    g(f"  s_add_u32 {s(S_CNT)}, {s(S_CNT)}, 1\n  s_cmp_lt_u32 {s(S_CNT)}, 8\n  s_cbranch_scc1 L_loop")
    for m in pv_mfmas(2, 1): g("  " + m)
    g.stamp(2)
    g.cstamp(6)
    g(f"""  v_lshrrev_b32 {v(VX)}, 2, {v(VL16)}
  s_mul_i32 s44, s3, 3072
  s_add_u32 s44, s44, {STATS}
  v_add_u32 {v(VX+1)}, s44, {v(VX)}
  s_xor_b32 s45, s3, 2
  s_mul_i32 s44, s45, 3072
  s_add_u32 s44, s44, {STATS}
  v_add_u32 {v(VX+2)}, s44, {v(VX)}
  s_nop 4""")
    for qt in range(6):
        g(f"  ds_write_b32 {v(VX+1)}, {v(NM(qt))} offset:{qt*512}")
        g(f"  ds_write_b32 {v(VX+1)}, {v(L(qt))} offset:{qt*512+256}")
    g("  s_waitcnt vmcnt(0) lgkmcnt(0)\n  s_barrier")
    for qt in range(6):
        g(f"  ds_read_b32 {v(S(0)+2*qt)}, {v(VX+2)} offset:{qt*512}")
        g(f"  ds_read_b32 {v(S(0)+2*qt+1)}, {v(VX+2)} offset:{qt*512+256}")
    if cfg.get("wopf", 1):
        g(f"""  s_mov_b32 {s(SWO)}, {s(S_WOP)}
  s_and_b32 {s(SWO+1)}, {s(S_WOP+1)}, 0xffff
  s_mov_b32 {s(SWO+2)}, {4096*1152}
  s_mov_b32 {s(SWO+3)}, 0x20000
  s_mul_i32 s44, s2, 18432
  s_mul_i32 s45, s3, 4608
  s_add_u32 s44, s44, s45""")
        for i in range(5):
            g(f"  buffer_load_dwordx4 {v(VX+24,4)}, {v(VL16)}, {s(SWO,4)}, s44 offen offset:{min(1024*i, 3584)}")
    g(f"""  s_mul_i32 s44, s3, 24576
  v_add_u32 {v(VX+8)}, s44, {v(VL16)}
  s_xor_b32 s45, s3, 2
  s_mul_i32 s44, s45, 24576
  v_add_u32 {v(VX+9)}, s44, {v(VL16)}
  s_mul_i32 s44, {s(S_RG)}, 6
  s_mul_i32 s45, {s(S_B)}, 12
  s_add_u32 s44, s44, s45
  s_lshl_b32 s44, s44, 5
  s_add_u32 s44, s44, {s(S_H)}
  s_lshl_b32 {s(S_T2)}, s44, 12
  s_mov_b32 s24, s32
  s_and_b32 s25, s33, 0xffff
  s_mov_b32 s26, {8*12*128*1024}
  s_mov_b32 s27, 0x20000
  s_waitcnt lgkmcnt(0)""")
    LS = VX + 6
    g(f"  v_add_f32 {v(LS)}, {v(L(0))}, {v(L(1))}")
    for qt in range(2, 6): g(f"  v_add_f32 {v(LS)}, {v(LS)}, {v(L(qt))}")
    for qt in range(6):
        nmo, nmp, lp = NM(qt), S(0) + 2 * qt, S(0) + 2 * qt + 1
        t, fo, fp = VX + 3, VX + 4, VX + 5
        go, gp = S(0) + 0, 0
        g(f"""  v_min_f32 {v(t)}, {v(nmo)}, {v(nmp)}
  v_sub_f32 {v(fo)}, {v(t)}, {v(nmo)}
  v_sub_f32 {v(fp)}, {v(t)}, {v(nmp)}
  v_exp_f32 {v(fo)}, {v(fo)}
  v_exp_f32 {v(fp)}, {v(fp)}
  s_nop 0
  v_mul_f32 {v(t)}, {v(L(qt))}, {v(fo)}
  v_fma_f32 {v(t)}, {v(lp)}, {v(fp)}, {v(t)}
  v_rcp_f32 {v(t)}, {v(t)}
  s_nop 0
  v_mul_f32 {v(NM(qt))}, {v(fo)}, {v(t)}
  v_mul_f32 {v(NM(qt)+2)}, {v(fp)}, {v(t)}""")
    for qt in range(6):
        go, gp = 96 + 4 * qt, 96 + 4 * qt + 2
        g(f"""  v_mov_b32 {v(go)}, {v(NM(qt))}
  v_mov_b32 {v(go+1)}, {v(NM(qt))}
  v_mov_b32 {v(gp)}, {v(NM(qt)+2)}
  v_mov_b32 {v(gp+1)}, {v(NM(qt)+2)}""")
    g(f"  s_cmp_eq_u32 {s(S_KH)}, 0\n  s_cbranch_scc0 L_ep1")
    epilogue_variant(g, 0)
    g("  s_branch L_ep_done")
    g.label("L_ep1")
    epilogue_variant(g, 1)
    g.label("L_ep_done")
    CH = VX + 10
    g(f"""  v_add_f32 {v(CH)}, {v(CH)}, {v(CH+1)}
  v_sub_f32 {v(CH)}, {v(CH)}, {v(CH)}
  v_cmp_u_f32 vcc, {v(CH)}, {v(CH)}
  s_mov_b64 s[46:47], vcc
  v_mov_b32 {v(CH+1)}, {hex(f2u(LTHR))}
  v_cmp_nle_f32 vcc, {v(LS)}, {v(CH+1)}
  s_or_b64 s[46:47], s[46:47], vcc
  s_cmp_lg_u64 s[46:47], 0
  s_cselect_b32 s44, 1, 0
  s_lshl_b32 s45, s3, 2
  s_add_u32 s45, s45, {FLAGS}
  v_mov_b32 {v(CH)}, s44
  v_mov_b32 {v(CH+1)}, s45
  ds_write_b32 {v(CH+1)}, {v(CH)}
  s_waitcnt lgkmcnt(0)
  s_barrier
  v_mov_b32 {v(CH+1)}, {FLAGS}
  ds_read_b128 {v(VX+12,4)}, {v(CH+1)}
  s_waitcnt lgkmcnt(0)
  v_or3_b32 {v(CH)}, {v(VX+12)}, {v(VX+13)}, {v(VX+14)}
  v_or_b32 {v(CH)}, {v(CH)}, {v(VX+15)}
  s_nop 0
  v_readfirstlane_b32 s44, {v(CH)}
  s_xor_b32 s45, {s(S_PASS)}, 1
  s_and_b32 s44, s44, s45
  s_cmp_lg_u32 s44, 0
  s_cbranch_scc1 L_fallback""")
    g("  s_waitcnt vmcnt(0)")
    if cfg.get("dbgout"):
        g.stamp(7)
        g(f"""  s_load_dwordx2 s[30:31], s[0:1], 48
  s_waitcnt lgkmcnt(0)
  s_and_b32 s44, s2, 63
  s_cmp_eq_u32 s44, {cfg.get("dbgout")-1}
  s_cbranch_scc0 L_k1_end
  s_cmp_eq_u32 s3, 0
  s_cbranch_scc0 L_k1_end
  s_lshr_b32 s44, s2, 6
  s_lshl_b32 s44, s44, 4
  s_sub_u32 s62, s62, s60
  s_sub_u32 s64, s64, s60
  s_sub_u32 s74, s74, s60
  s_sub_u32 s72, s72, s70
  v_mov_b32 v20, s62
  v_mov_b32 v21, s64
  v_mov_b32 v22, s74
  v_mov_b32 v23, s72
  v_mov_b32 v24, s44
  v_cmp_eq_u32 vcc, 0, {v(VL16)}
  s_and_saveexec_b64 s[46:47], vcc
  s_waitcnt lgkmcnt(0)
  global_store_dwordx4 v24, v[20:23], s[30:31]
  s_waitcnt vmcnt(0)""")
    elif cfg.get("stamps"):
        g.stamp(7)
        g(f"""  s_add_u32 s30, s32, {hex(STAMP_OFF)}
  s_addc_u32 s31, s33, 0
  s_lshl_b32 s44, s2, 6
  s_add_u32 s30, s30, s44
  s_addc_u32 s31, s31, 0
  v_mov_b32 v24, 0
  s_cmp_eq_u32 s3, {cfg.get("stampwave", 0)}
  s_cbranch_scc0 L_k1_end
  v_cmp_eq_u32 vcc, 0, {v(VL16)}
  s_and_saveexec_b64 s[46:47], vcc
  s_cbranch_execz L_k1_end""")
        for i in (0, 1, 2, 3, 5, 6, 7):
            g(f"  v_mov_b32 v20, {s(S_STAMP+2*i)}\n  v_mov_b32 v21, {s(S_STAMP+2*i+1)}\n  global_store_dwordx2 v24, v[20:21], s[30:31] offset:{8*i}\n  s_nop 1")
        g("  s_waitcnt vmcnt(0)")
        if cfg.get("trace") or cfg.get("qtrace"):
            g(f"""  s_mov_b64 exec, -1
  s_add_u32 s30, s32, {hex(STAMP_OFF - 0xc000)}
  s_addc_u32 s31, s33, 0
  s_lshl_b32 s44, s2, 7
  s_add_u32 s30, s30, s44
  s_addc_u32 s31, s31, 0
  v_lshrrev_b32 v24, 2, {v(VL16)}
  v_cmp_gt_u32 vcc, 128, v24
  s_and_saveexec_b64 s[46:47], vcc
  global_store_dword v24, v250, s[30:31]
  s_sub_u32 s30, s30, 0x8000
  s_subb_u32 s31, s31, 0
  global_store_dword v24, v251, s[30:31]
  s_waitcnt vmcnt(0)""")
    g.label("L_k1_end")
    g("  s_endpgm")
    g.label("L_fallback")
    g(f"""  s_waitcnt vmcnt(0) lgkmcnt(0)
  s_mov_b32 {s(S_PASS)}, 1
  s_barrier
  s_branch L_restart""")
    g.label("L_maxpass")
    for i in range(24): g(f"  v_mov_b32 {v(VL+i)}, 0")
    for i in range(8): g(f"  v_mov_b32 {v(P(1)+i)}, 0")
    for qt in range(6): g(f"  v_mov_b32 {v(NM(qt))}, 0xff800000")
    g(f"""  s_mov_b32 {s(S_CNT)}, 0
  s_mov_b32 {s(S_T1)}, {s(S_M0B)}
  s_waitcnt vmcnt(0) lgkmcnt(0)
  s_barrier""")
    g.label("L_mp_loop")
    g(f"  s_add_u32 m0, {s(S_M0B)}, {3*SLOT}\n  s_nop 0")
    for p in range(4):
        g(f"  buffer_load_dwordx4 {v(VKD+p)}, {s(SK,4)}, {s(S_T1)} offen offset:{1024*p} lds")
    g("  s_waitcnt vmcnt(0)\n  s_barrier")
    for ks in range(4):
        for kt in range(2):
            g("  " + kread(kt, ks, 3))
    g("  s_waitcnt lgkmcnt(0)\n  s_barrier")
    for j in range(3):
        for m in qk_mfmas(j, 0, czero=True): g("  " + m)
        g("  s_nop 7")
        for qi in range(2):
            qt = 2 * j + qi
            for kt in range(2):
                b = S(0, kt, qi)
                g(f"  v_max3_f32 {v(NM(qt))}, {v(NM(qt))}, {v(b)}, {v(b+1)}")
                g(f"  v_max3_f32 {v(NM(qt))}, {v(NM(qt))}, {v(b+2)}, {v(b+3)}")
        g("  s_nop 1")
    g(f"""  s_add_u32 {s(S_T1)}, {s(S_T1)}, 16384
  s_add_u32 {s(S_CNT)}, {s(S_CNT)}, 1
  s_cmp_lt_u32 {s(S_CNT)}, 32
  s_cbranch_scc1 L_mp_loop""")
    rowmax_finish()
    g(f"  s_add_u32 m0, {s(S_M0B)}, {3*SLOT}\n  s_nop 0")
    for p in range(4):
        g(f"  buffer_load_dwordx4 {v(VKD+p)}, {s(SK,4)}, {s(S_M0B)} offen offset:{1024*p} lds")
    g("  s_waitcnt vmcnt(0)\n  s_barrier")
    for ks in range(4):
        for kt in range(2):
            g("  " + kread(kt, ks, 3))
    g("  s_waitcnt lgkmcnt(0)\n  s_branch L_join")

def gen_k2(g):
    cfg = g.cfg
    NPF = cfg.get("k2_depth", 6)
    RING = 8
    g(f".globl {K2}\n.p2align 8\n.type {K2},@function\n{K2}:")
    g("  s_cmp_ge_u32 s2, 216\n  s_cbranch_scc1 L_k2_end")
    g("  s_load_dwordx4 s[4:7], s[0:1], 32\n  s_load_dwordx2 s[32:33], s[0:1], 56")
    if cfg.get("stamps"): g(f"  s_memrealtime {s(S_STAMP,2)}")
    g("""  v_lshrrev_b32 v1, 6, v0
  v_and_b32 v2, 63, v0
  s_and_b32 s34, s2, 7                 ; b
  v_readfirstlane_b32 s3, v1
  s_lshr_b32 s35, s2, 3                ; qp*9+nt
  s_mul_i32 s36, s35, 57
  s_lshr_b32 s36, s36, 9               ; qp
  s_mul_i32 s37, s36, 9
  s_sub_u32 s37, s35, s37              ; nt
  v_lshrrev_b32 v3, 4, v2
  v_and_b32 v4, 15, v2
  v_lshlrev_b32 v10, 4, v2""")
    g("""  v_lshrrev_b32 v7, 3, v2
  v_and_b32 v8, 7, v2
  v_lshrrev_b32 v9, 1, v7
  v_and_b32 v9, 3, v9
  v_lshlrev_b32 v9, 1, v9
  v_xor_b32 v8, v8, v9
  v_lshlrev_b32 v8, 4, v8
  v_mul_u32_u24 v7, 1152, v7
  v_add_u32 v11, v7, v8
  v_add_u32 v12, 8192, v11
  v_add_u32 v13, 16384, v11
  v_add_u32 v14, 24576, v11""")
    g("""  s_mul_i32 s44, s34, 12
  s_lshl_b32 s45, s36, 2
  s_add_u32 s44, s44, s45
  s_lshl_b32 s44, s44, 17
  s_lshl_b32 s45, s3, 15
  s_add_u32 s38, s44, s45""")
    g(f"  s_mul_i32 s40, s3, {1024*1152}")
    g("  s_lshl_b32 s41, s3, 15")
    g("  s_waitcnt lgkmcnt(0)")
    g(f"""  s_lshl_b32 s44, s37, 7
  s_add_u32 s8, s4, s44
  s_addc_u32 s9, s5, 0
  s_and_b32 s9, s9, 0xffff
  s_sub_u32 s10, {4096*1152}, s44
  s_mov_b32 s11, 0x20000
  s_mov_b32 s12, s32
  s_and_b32 s13, s33, 0xffff
  s_mov_b32 s14, {8*12*128*1024}
  s_mov_b32 s15, 0x20000
  s_mov_b32 s16, s6
  s_and_b32 s17, s7, 0xffff
  s_mov_b32 s18, {8*192*1152}
  s_mov_b32 s19, 0x20000""")
    ACC = lambda mt, nt: 32 + (mt * 4 + nt) * 4
    NB = NPF + 1
    BF = lambda k, nt: 96 + ((k % NB) * 4 + nt) * 4
    AFB = 96 + NB * 16
    AF = lambda k, mt: AFB + ((k & 1) * 4 + mt) * 4
    assert AFB + 32 <= 256
    def issue(k):
        L_ = []
        L_.append(f"s_add_u32 m0, s41, {(k % RING)*4096}")
        L_.append(f"s_add_u32 s44, s40, {k*32*1152}")
        for p in range(4):
            L_.append(f"buffer_load_dwordx4 {v(11+p)}, s[8:11], s44 offen offset:{1024*p} lds")
        for nt in range(4):
            L_.append(f"s_add_u32 s45, s38, {nt*131072 + k*1024}")
            L_.append(f"buffer_load_dwordx4 {v(BF(k,nt),4)}, v10, s[12:15], s45 offen")
        return L_
    def areads(k):
        L_ = []
        for mt in range(4):
            for half in range(2):
                L_.append(f"ds_read_b64_tr_b16 {v(AF(k,mt)+2*half,2)}, {v(16+mt)} offset:{(k%RING)*4096 + half*2048}")
        return L_
    assert NPF + 1 <= RING
    for k in range(NPF):
        for ins in issue(k): g("  " + ins)
    g("""  v_lshrrev_b32 v7, 2, v4             ; r
  v_and_b32 v8, 3, v4                  ; c
  v_lshl_add_u32 v9, v3, 2, v7         ; row = 4g+r
  v_lshrrev_b32 v5, 1, v9
  v_and_b32 v5, 3, v5
  v_lshlrev_b32 v5, 1, v5
  v_lshrrev_b32 v6, 1, v8
  v_xor_b32 v5, v5, v6
  v_lshlrev_b32 v5, 4, v5
  v_and_b32 v6, 1, v8
  v_lshl_add_u32 v5, v6, 3, v5
  v_lshl_add_u32 v5, v9, 7, v5
  v_add_u32 v16, s41, v5
  v_xor_b32 v17, 32, v16
  v_xor_b32 v18, 64, v16
  v_xor_b32 v19, 96, v16""")
    g(f"  s_waitcnt vmcnt({8*(NPF-1)})")
    for ins in areads(0): g("  " + ins)
    NK = 32
    for k in range(NK):
        nxt = issue(k + NPF) if k + NPF < NK else []
        outstanding_after = min(NK, k + NPF + 1) - (k + 2)
        mf = []
        for mt in range(4):
            for nt in range(4):
                c = "0" if k == 0 else v(ACC(mt, nt), 4)
                mf.append(f"{MF} {v(ACC(mt,nt),4)}, {v(AF(k,mt),4)}, {v(BF(k,nt),4)}, {c}")
        g("  s_waitcnt lgkmcnt(0)")
        spread(g, mf[:8], nxt)
        if k + 1 < NK:
            g(f"  s_waitcnt vmcnt({8*max(0,outstanding_after)})")
            spread(g, mf[8:], areads(k + 1))
        else:
            spread(g, mf[8:], [])
    g.stamp(2)
    PITCH = 272
    g("  s_nop 7\n  s_barrier")
    g(f"""  v_mul_u32_u24 v7, {PITCH}, v4
  v_lshl_add_u32 v7, v3, 4, v7
  s_mul_i32 s45, s3, {64*PITCH}
  v_add_u32 v7, s45, v7""")
    for mt in range(4):
        for nt in range(4):
            g(f"  ds_write_b128 v7, {v(ACC(mt,nt),4)} offset:{nt*16*PITCH + mt*64}")
    g("  s_waitcnt lgkmcnt(0)\n  s_barrier")
    g(f"""  v_lshrrev_b32 v7, 3, v0
  v_and_b32 v8, 7, v0
  v_mul_u32_u24 v9, {PITCH}, v7
  v_lshl_add_u32 v9, v8, 5, v9""")
    for i in range(2):
        for w in range(4):
            for hq in range(2):
                g(f"  ds_read_b128 {v(96 + ((i*4+w)*2+hq)*4, 4)}, v9 offset:{i*32*PITCH + w*64*PITCH + hq*16}")
    g(f"""  s_mul_i32 s45, s34, 192
  s_lshl_b32 s46, s36, 6
  s_add_u32 s45, s45, s46
  s_mul_i32 s45, s45, 1152
  s_lshl_b32 s46, s37, 7
  s_add_u32 s45, s45, s46
  v_mul_u32_u24 v7, 1152, v7
  v_lshl_add_u32 v7, v8, 4, v7""")
    for i in range(2):
        g(f"  s_waitcnt lgkmcnt({8 if i == 0 else 0})")
        b0 = 96 + i * 32
        for w in range(1, 4):
            for e in range(0, 8, 2):
                g(f"  v_pk_add_f32 {v(b0+e,2)}, {v(b0+e,2)}, {v(b0+w*8+e,2)}")
        for e in range(4):
            g(f"  v_cvt_pk_bf16_f32 {v(b0+e)}, {v(b0+2*e)}, {v(b0+2*e+1)}")
        g(f"  s_add_u32 s46, s45, {i*32*1152}")
        g(f"  buffer_store_dwordx4 {v(b0,4)}, v7, s[16:19], s46 offen")
    g("  s_waitcnt vmcnt(0)")
    if cfg.get("stamps") and not cfg.get("dbgout"):
        g.stamp(7)
        g(f"""  s_add_u32 s30, s32, {hex(STAMP_OFF - 0x4000)}
  s_addc_u32 s31, s33, 0
  s_lshl_b32 s44, s2, 6
  s_add_u32 s30, s30, s44
  s_addc_u32 s31, s31, 0
  v_mov_b32 v24, 0
  v_cmp_eq_u32 vcc, 0, v0
  s_and_saveexec_b64 s[46:47], vcc
  s_cbranch_execz L_k2_end""")
        for i in (0, 2, 7):
            g(f"  v_mov_b32 v20, {s(S_STAMP+2*i)}\n  v_mov_b32 v21, {s(S_STAMP+2*i+1)}\n  global_store_dwordx2 v24, v[20:21], s[30:31] offset:{8*i}\n  s_nop 1")
        g("  s_waitcnt vmcnt(0)")
    g.label("L_k2_end")
    g("  s_endpgm")

def generate(cfg):
    g = Gen(cfg)
    g(HEADER.rstrip())
    if cfg.get("only") != 2:
        g(f"; @launch kernel={K1} grid=(256,1,1) block=(256,1,1) lds=163840")
    if cfg.get("only") != 1:
        g(f"; @launch kernel={K2} grid=(216,1,1) block=(256,1,1) lds=131072")
    g('.amdgcn_target "amdgcn-amd-amdhsa--gfx950"\n.text')
    gen_k1(g)
    gen_k2(g)
    g('.section .rodata,"a"\n.p2align 6')
    g(kernel_desc(K1, 512, 96, 256))
    g(".p2align 6")
    g(kernel_desc(K2, 256, 96, 256))
    return g.text()

if __name__ == "__main__":
    import json
    out = sys.argv[1]
    cfg = json.loads(sys.argv[2]) if len(sys.argv) > 2 else {}
    open(out, "w").write(generate(cfg))
```

```python
import sys, math, struct
from asmlib import *

def f2u(x): return struct.unpack("<I", struct.pack("<f", x))[0]
def v(b, n=1): return f"v{b}" if n == 1 else f"v[{b}:{b+n-1}]"
def a(b, n=1): return f"a{b}" if n == 1 else f"a[{b}:{b+n-1}]"
def s(b, n=1): return f"s{b}" if n == 1 else f"s[{b}:{b+n-1}]"
MF = "v_mfma_f32_16x16x32_bf16"

K1 = "attn_fused_kernel"
K2 = "outproj_kernel"

VQ = 0
VS = 96
VP = 128
VNM = 144
VL = 168
VONE = 192
VKA = 196
VVA = 204
VKD = 220
VVD = 224
VL16 = 226
VX = 228
AO = 0
AK = 192
AV = 224

def Q(qt, ks): return VQ + (qt * 4 + ks) * 4
def S(p, kt=0, qi=0): return VS + 16 * p + (kt * 2 + qi) * 4
def P(p, qi=0): return VP + 8 * p + 4 * qi
def NM(qt): return VNM + 4 * qt
def L(qt): return VL + 4 * qt
def O(qt, dt): return AO + (qt * 8 + dt) * 4
def KF(kt, ks): return AK + (ks * 2 + kt) * 4
def VF(dt): return AV + 4 * dt

SK, SV, SX, SW, SO = 8, 12, 16, 20, 24
S_B, S_H, S_RG, S_KH = 34, 35, 36, 37
S_KOFF, S_VOFF, S_CNT, S_PASS, S_M0B = 38, 39, 40, 41, 43
S_T0, S_T1, S_T2, S_T3 = 44, 45, 46, 47
S_SC = 48
S_WM, S_XM, S_XSO, S_WSO = 50, 51, 54, 55
S_J = 56
S_STAMP = 60
SWO = 84
S_WOP = 58

SLOT = 32768
WB = 114688
STATS = 131072
FLAGS = 163840 - 64
STAMP_OFF = 0x1fffc000
LTHR = 2.0 ** 40

class Gen(Asm):
    def __init__(self, cfg):
        super().__init__()
        self.cfg = cfg
    def stamp(self, i):
        if self.cfg.get("stamps"):
            self(f"  s_memrealtime {s(S_STAMP + 2*i, 2)}\n  s_waitcnt lgkmcnt(0)")
    def tstamp(self, i):
        if self.cfg.get("qtrace"):
            ins = "s_memtime" if self.cfg.get("qclk") else "s_memrealtime"
            self(f"  {ins} s[76:77]\n  s_waitcnt lgkmcnt(0)\n  v_writelane_b32 v250, s76, {i}")
    def cstamp(self, i):
        if self.cfg.get("stamps"):
            self(f"  s_memtime {s(S_STAMP + 2*i, 2)}\n  s_waitcnt lgkmcnt(0)")

class VM:
    def __init__(self): self.ops = []
    def issue(self, tag, n=1): self.ops += [tag] * n
    def wait_for(self, *tags):
        last = -1
        for i, t in enumerate(self.ops):
            if t in tags: last = i
        n = len(self.ops) - 1 - last
        return min(n, 63)

def spread(g, mfmas, extra, cap=2):
    n = len(mfmas)
    per = [[] for _ in range(n)]
    for idx, ins in enumerate(extra):
        per[min(n - 1, idx * n // max(1, len(extra)))].append(ins)
    for i in range(n):
        g("  " + mfmas[i])
        for ins in per[i]: g("  " + ins)

def dma_k(slot):
    L_ = [(f"s_add_u32 m0, {s(S_M0B)}, {slot*SLOT}", 4)]
    L_.append(("s_nop 0", 0))
    for p in range(4):
        L_.append((f"buffer_load_dwordx4 {v(VKD+p)}, {s(SK,4)}, {s(S_KOFF)} offen offset:{1024*p} nt lds", 4))
    L_.append((f"s_add_u32 {s(S_KOFF)}, {s(S_KOFF)}, 16384", 4))
    return L_
def dma_v(slot):
    L_ = [(f"s_add_u32 m0, {s(S_M0B)}, {slot*SLOT+16384}", 4)]
    L_.append(("s_nop 0", 0))
    for p in range(4):
        L_.append((f"buffer_load_dwordx4 {v(VVD+(p&1))}, {s(SV,4)}, {s(S_VOFF)} offen offset:{1024*p} nt lds", 4))
    L_.append((f"s_add_u32 {s(S_VOFF)}, {s(S_VOFF)}, 16384", 4))
    return L_

def kread(kt, ks, slot):
    base = VKA + (0 if slot < 2 else 4) + ks
    return f"ds_read_b128 {a(KF(kt,ks),4)}, {v(base)} offset:{(slot&1)*SLOT + kt*4096}"
def vread(dt, half, slot):
    base = VVA + (0 if slot < 2 else 8) + dt
    return f"ds_read_b64_tr_b16 {a(VF(dt)+2*half,2)}, {v(base)} offset:{(slot&1)*SLOT + half*4096}"

def qk_mfmas(j, sp, czero=False):
    L_ = []
    for ks in range(4):
        for kt in range(2):
            for qi in range(2):
                d = S(sp, kt, qi)
                c = (("0" if czero else v(NM(2*j+qi), 4)) if ks == 0 else v(d, 4))
                L_.append(f"{MF} {v(d,4)}, {a(KF(kt,ks),4)}, {v(Q(2*j+qi,ks),4)}, {c}")
    return L_
def pv_mfmas(j, pp):
    L_ = []
    for dt in range(8):
        for qi in range(2):
            d = O(2*j+qi, dt)
            L_.append(f"{MF} {a(d,4)}, {a(VF(dt),4)}, {v(P(pp,qi),4)}, {a(d,4)}")
    for qi in range(2):
        d = L(2*j+qi)
        L_.append(f"{MF} {v(d,4)}, {v(VONE,4)}, {v(P(pp,qi),4)}, {v(d,4)}")
    return L_

def softmax_items(p):
    exps = []; cvts = []
    for qi in range(2):
        for kt in range(2):
            for h in range(2):
                r0 = S(p, kt, qi) + 2 * h
                exps.append(f"v_exp_f32 {v(r0)}, {v(r0)}")
                exps.append(f"v_exp_f32 {v(r0+1)}, {v(r0+1)}")
                cvts.append((f"v_cvt_pk_bf16_f32 {v(P(p,qi)+2*kt+h)}, {v(r0)}, {v(r0+1)}", len(exps)))
    return exps, cvts

def stage(g, t, j):
    cfg = g.cfg
    u = 3 * t + j
    par = u & 1
    jn, jp = (j + 1) % 3, (j + 2) % 3
    slot = t & 3
    mf = qk_mfmas(jn, par ^ 1) + pv_mfmas(jp, par ^ 1)
    n = len(mf)
    fixed = {i: [] for i in range(n)}
    pre = []
    dslot = (slot + 3) & 3
    kpos = cfg.get("kdma", (0, 0)); vpos = cfg.get("vdma", (1, 24))
    def place(L_, start):
        grp = [L_[0:3]] + [[x] for x in L_[3:]]
        for i, x in enumerate(grp):
            fixed[min(n - 1, start + i)] += x
    if j == 0:
        for dt in range(8):
            fixed[16 + 2 * dt + 1] += [(vread(dt, 0, slot), 4), (vread(dt, 1, slot), 4)]
    elif j == 1:
        fixed[15] += [("s_waitcnt lgkmcnt(0)", 4)]
        i = 16
        for ks in range(4):
            for kt in range(2):
                fixed[i] += [(kread(kt, ks, slot), 4)]; i += 1
    elif j == 2:
        pre.append("s_waitcnt lgkmcnt(0)")
    if j == kpos[0]: place(dma_k(dslot), kpos[1])
    if j == vpos[0]: place(dma_v(dslot), vpos[1])
    if cfg.get("nodma"):
        fixed = {k: [x for x in L_ if not x[0].startswith("buffer_load")] for k, L_ in fixed.items()}
    exps, cvts = softmax_items(par)
    if cfg.get("nosm"): exps, cvts = [], []
    for ins in pre: g("  " + ins)
    if j == 2 and cfg.get("trace"):
        g("  s_mov_b32 s79, m0\n  s_mov_b32 m0, s78\n  s_nop 0\n  v_writelane_b32 v250, s76, m0\n  v_writelane_b32 v251, s80, m0\n  s_mov_b32 m0, s79\n  s_nop 0")
    ei = ci = 0
    for i in range(n):
        g("  " + mf[i])
        free = 8
        last_was_exp = False
        for ins, c in fixed[i]:
            g("  " + ins); free -= c
        emitted_e_at_start = ei
        while True:
            if ei < len(exps) and free >= 8:
                g("  " + exps[ei]); ei += 1; free -= 8; last_was_exp = True
            elif ci < len(cvts) and free >= 4 and cvts[ci][1] <= emitted_e_at_start and (ei == len(exps) or free < 8):
                g("  " + cvts[ci][0]); ci += 1; free -= 4
            else:
                break
        if i == n - 1:
            if ei < len(exps) or ci < len(cvts):
                while ei < len(exps):
                    g("  " + exps[ei]); ei += 1
                g("  s_nop 0")
                while ci < len(cvts):
                    g("  " + cvts[ci][0]); ci += 1

BB = (0, 40960, 114688)
XA = lambda hi, st: VX + hi * 2 + st
WA = lambda hi, sl: VX + 4 + hi * 2 + sl
XD = lambda p: VX + 8 + p
WD = lambda p: VX + 14 + p
TD = lambda i: VX + 18 + i
EXW, EXR = 252, 253
def qproj(g):
    cfg = g.cfg
    AF = lambda buf, mt: buf * 16 + mt * 4
    BF = lambda buf, qt: 32 + buf * 24 + qt * 4
    ACC = lambda mt, qt: 96 + (mt * 6 + qt) * 4
    xf = cfg.get("xflag", ""); wf = cfg.get("wflag", ""); tf = cfg.get("tflag", "")
    vm = VM()
    def sload(k):
        L_ = []
        bb = BB[k % 3]
        if cfg.get("rot", 1):
            if k > 0:
                L_.append(f"s_add_u32 {s(S_J)}, {s(S_J)}, 1")
                L_.append(f"s_cmp_eq_u32 {s(S_J)}, 9")
                L_.append(f"s_cselect_b32 {s(S_J)}, 0, {s(S_J)}")
            L_.append(f"s_lshl_b32 {s(S_T1)}, {s(S_J)}, 19")
            L_.append(f"s_add_u32 m0, {s(S_WM)}, {bb}")
            L_.append(f"s_add_u32 {s(S_T1)}, {s(S_T1)}, {s(S_WSO)}")
        else:
            L_.append(f"s_add_u32 m0, {s(S_WM)}, {bb}")
            L_.append(f"s_add_u32 {s(S_T1)}, {s(S_WSO)}, {k*64*8192}")
        for p in range(4):
            L_.append(f"buffer_load_dwordx4 {v(WD(p))}, {s(SW,4)}, {s(S_T1)} offen offset:{1024*p}{wf} lds")
        if cfg.get("rot", 1):
            L_.append(f"s_lshl_b32 {s(S_T0)}, {s(S_J)}, 7")
            L_.append(f"s_add_u32 m0, {s(S_XM)}, {bb}")
            L_.append(f"s_add_u32 {s(S_T0)}, {s(S_T0)}, {s(S_XSO)}")
        else:
            L_.append(f"s_add_u32 m0, {s(S_XM)}, {bb}")
            L_.append(f"s_add_u32 {s(S_T0)}, {s(S_XSO)}, {k*128}")
        for p in range(4):
            L_.append(f"buffer_load_dwordx4 {v(XD(p))}, {s(SX,4)}, {s(S_T0)} offen offset:{1024*p}{xf} lds")
        L_.append(f"s_add_u32 m0, {s(S_XM)}, {bb + 4096}")
        L_.append("s_nop 0")
        for p in range(4, 6):
            L_.append(f"buffer_load_dwordx4 {v(XD(p))}, {s(SX,4)}, {s(S_T0)} offen offset:{1024*(p-4)}{xf} lds")
        vm.issue(f"S{k}", 10)
        return L_
    def touch():
        L_ = []
        if cfg.get("ntouch", 0):
            L_.append(f"buffer_load_dword {v(248)}, {v(TD(0))}, {s(SW,4)}, 0 offen{tf}")
            L_.append(f"buffer_load_dword {v(249)}, {v(TD(1))}, {s(SX,4)}, 0 offen{tf}")
            vm.issue("T", 2)
        return L_
    def quad(tag, srd, isK, goff, loff):
        L_ = [f"s_add_u32 m0, {s(S_M0B)}, {loff}", f"s_add_u32 {s(S_T0)}, {s(S_M0B)}, {goff}"]
        for p in range(4):
            vo = VKD + p if isK else VVD + (p & 1)
            L_.append(f"buffer_load_dwordx4 {v(vo)}, {s(srd,4)}, {s(S_T0)} offen offset:{1024*p} nt lds")
        vm.issue(tag, 4)
        return L_
    def G(t):
        return quad(f"G{t}", SK, True, (t + 1) * 16384, t * SLOT) + quad(f"G{t}", SV, False, t * 16384, t * SLOT + 16384)
    K0 = lambda: quad("K0", SK, True, 0, 3 * SLOT)
    g.tstamp(1)
    k0pos = cfg.get("k0pos", 1)
    tpos = cfg.get("tpos", 0)
    pro = (touch() if tpos == 0 else []) + sload(0) + (touch() if tpos == 1 else [])
    if k0pos == 0: pro += K0()
    pro += sload(1)
    for ins in pro: g("  " + ins)
    g.tstamp(2)
    cfg["_setup"](g)
    later = {(0, 0): lambda: sload(2)}
    for k in range(6): later[(k, 1)] = (lambda k=k: sload(k + 3))
    if k0pos == 1:
        later[(5, 1)] = lambda: sload(8) + K0()
    gp = cfg.get("gpos", [[6, 1], [8, 1], None])
    post = []
    for t in range(3):
        if gp[t] is None:
            post.append(t)
        else:
            key = tuple(gp[t]); prev = later.get(key)
            later[key] = (lambda t=t, prev=prev: (prev() if prev else []) + G(t))
    def reads(k, step):
        L_ = []
        hi = 1 if k % 3 == 2 else 0
        bb = 0 if hi else BB[k % 3]
        buf = step
        for mt in range(4):
            sl, hf = mt >> 1, mt & 1
            for half in range(2):
                L_.append(f"ds_read_b64_tr_b16 {v(AF(buf,mt)+2*half,2)}, {v(WA(hi,sl))} offset:{bb + step*8192 + half*1024 + hf*8}")
            if mt == 0:
                for qt in range(6):
                    L_.append(f"ds_read_b128 {v(BF(buf,qt),4)}, {v(XA(hi,step))} offset:{bb + qt*2048}")
        return L_
    def mfmas(k, step):
        L_ = []
        st = 2 * k + step
        for mt in range(4):
            for qt in range(6):
                c = "0" if st == 0 else v(ACC(mt, qt), 4)
                L_.append(f"{MF} {v(ACC(mt,qt),4)}, {v(AF(step,mt),4)}, {v(BF(step,qt),4)}, {c}")
        return L_
    zl = [f"v_accvgpr_write_b32 {a(i)}, 0" for i in list(range(192)) + list(range(AV, AV + 32))]
    def zeros(n):
        r = zl[:n]; del zl[:n]
        return r
    def mix(*lists):
        tot = sum(len(x) for x in lists)
        out = []; idx = [0] * len(lists)
        for _ in range(tot):
            best = min((i for i in range(len(lists)) if idx[i] < len(lists[i])), key=lambda i: (idx[i] + 0.5) / len(lists[i]))
            out.append(lists[best][idx[best]]); idx[best] += 1
        return out
    def grp(L_):
        out = []; cur = []
        for ins in L_:
            cur.append(ins)
            if ins.startswith("buffer_load"):
                out.append("\n  ".join(cur)); cur = []
        if cur: out.append("\n  ".join(cur))
        return out
    def place(mf, rd, dm, zs):
        n = len(mf)
        per = [[] for _ in range(n)]; cost = [0] * n
        rstep = cfg.get("rstep", 1)
        for i, x in enumerate(rd):
            j = min(n - 1, i * rstep); per[j].append(x); cost[j] += 1
        for i, x in enumerate(dm):
            j = min(n - 1, (i * n) // max(1, len(dm)) + cfg.get("dshift", 0)); per[j].append(x); cost[j] += 1 + x.count("\n")
        for x in zs:
            j = min(range(n), key=lambda q: (cost[q], -q)); per[j].append(x); cost[j] += 1
        for i in range(n):
            g("  " + mf[i])
            for x in per[i]: g("  " + x)
    g(f"  s_waitcnt vmcnt({vm.wait_for('S0')})")
    g.tstamp(3)
    g("  s_barrier")
    g.tstamp(4)
    g.stamp(3)
    for ins in reads(0, 0): g("  " + ins)
    for k in range(9):
        g("  s_waitcnt lgkmcnt(0)")
        lat = later.get((k, 0))
        place(mfmas(k, 0), reads(k, 1), grp(lat()) if lat else [], zeros(25 if k < 8 else len(zl)))
        g("  s_waitcnt lgkmcnt(0)")
        if k < 8:
            g(f"  s_waitcnt vmcnt({vm.wait_for('S%d' % (k+1))})")
        g.tstamp(5 + 2 * k)
        g("  s_barrier")
        g.tstamp(6 + 2 * k)
        lat = later.get((k, 1))
        place(mfmas(k, 1), reads(k + 1, 0) if k < 8 else [], grp(lat()) if lat else [], [])
    assert not zl
    g.tstamp(23)
    g("  s_nop 7")
    for qt in range(6):
        for mt in range(4):
            ac = ACC(mt, qt)
            for i in (0, 2):
                g(f"  v_pk_mul_f32 {v(ac+i,2)}, {v(ac+i,2)}, {s(S_SC,2)}")
    for qt in range(6):
        for sl in range(2):
            q = Q(qt, sl)
            for hf in range(2):
                ac = ACC(2 * sl + hf, qt)
                for i in range(2):
                    g(f"  v_cvt_pk_bf16_f32 {v(q+2*hf+i)}, {v(ac+2*i)}, {v(ac+2*i+1)}")
            g(f"  ds_write_b128 {v(EXW)}, {v(q,4)} offset:{(qt*2+sl)*1024}")
    g(f"  s_waitcnt vmcnt({vm.wait_for('K0')}) lgkmcnt(0)")
    g.tstamp(24)
    g("  s_barrier")
    g.tstamp(25)
    for qt in range(6):
        for sl in range(2):
            g(f"  ds_read_b128 {v(Q(qt,2+sl),4)}, {v(EXR)} offset:{(qt*2+sl)*1024}")
    for t in post:
        for ins in G(t): g("  " + ins)

def epilogue_variant(g, kh):
    keep = [4 * kh + i for i in range(4)]; send = [4 * (1 - kh) + i for i in range(4)]
    for qt in range(6):
        for di, dt in enumerate(send):
            g(f"  ds_write_b128 {v(VX+8)}, {a(O(qt,dt),4)} offset:{(qt*4+di)*1024}")
    g("  s_waitcnt lgkmcnt(0)")
    g("  s_barrier")
    for qt in range(6):
        for di in range(4):
            g(f"  ds_read_b128 {v((qt*4+di)*4,4)}, {v(VX+9)} offset:{(qt*4+di)*1024}")
    CH = VX + 10
    g(f"  v_mov_b32 {v(CH)}, 0\n  v_mov_b32 {v(CH+1)}, 0")
    for qt in range(6):
        go, gp = 96 + 4 * qt, 96 + 4 * qt + 2
        ob = 120 + (qt & 1) * 16
        for di, dt in enumerate(keep):
            for r in range(4):
                g(f"  v_accvgpr_read_b32 {v(ob+4*di+r)}, {a(O(qt,dt)+r)}")
        rem = 24 - (qt + 1) * 4
        g(f"  s_waitcnt lgkmcnt({min(rem,15)})")
        pb = qt * 16
        for i in range(0, 16, 2):
            g(f"  v_pk_mul_f32 {v(pb+i,2)}, {v(pb+i,2)}, {v(gp,2)}")
        for i in range(0, 16, 2):
            g(f"  v_pk_fma_f32 {v(pb+i,2)}, {v(ob+i,2)}, {v(go,2)}, {v(pb+i,2)}")
        for i in range(8):
            g(f"  v_cvt_pk_bf16_f32 {v(ob+i)}, {v(pb+2*i)}, {v(pb+2*i+1)}")
        for sidx in range(2):
            off = qt * 32 * 4 * 1024 + (2 * kh + sidx) * 1024
            g(f"  s_add_u32 {s(S_T0)}, {s(S_T2)}, {off}")
            g(f"  buffer_store_dwordx4 {v(ob+4*sidx,4)}, {v(VL16)}, {s(SO,4)}, {s(S_T0)} offen{g.cfg.get('ostore',' sc1')}")
        for i in range(0, 16, 2):
            g(f"  v_pk_add_f32 {v(CH,2)}, {v(CH,2)}, {v(pb+i,2)}")

def gen_k1(g):
    cfg = g.cfg
    g(f".globl {K1}\n.p2align 8\n.type {K1},@function\n{K1}:")
    g("  s_cmp_ge_u32 s2, 256\n  s_cbranch_scc1 L_k1_end")
    g(f"  s_load_dwordx4 s[4:7], s[0:1], 0\n  s_load_dwordx4 s[28:31], s[0:1], 16\n  s_load_dwordx2 s[32:33], s[0:1], 56\n  s_load_dwordx2 {s(S_WOP,2)}, s[0:1], 32")
    if cfg.get("stamps"): g(f"  s_memrealtime {s(S_STAMP,2)}")
    if cfg.get("qtrace"): g("  v_mov_b32 v250, 0\n  v_mov_b32 v251, 0")
    g(f"  v_lshrrev_b32 v1, 6, v0\n  s_mov_b32 {s(S_PASS)}, 0\n  v_readfirstlane_b32 s3, v1")
    mm = cfg.get("map", 3)
    g("  s_and_b32 s44, s2, 7\n  s_lshr_b32 s45, s2, 3")
    if mm == 2:
        g(f"  s_mov_b32 {s(S_B)}, s44\n  s_mov_b32 {s(S_H)}, s45")
    elif mm == 3:
        g(f"""  s_and_b32 s46, s44, 1
  s_lshl_b32 s46, s46, 2
  s_and_b32 s47, s45, 3
  s_add_u32 {s(S_B)}, s46, s47
  s_lshr_b32 s46, s44, 1
  s_lshl_b32 s46, s46, 3
  s_lshr_b32 s47, s45, 2
  s_add_u32 {s(S_H)}, s46, s47""")
    elif mm == 0:
        g(f"  s_lshr_b32 {s(S_B)}, s2, 5\n  s_and_b32 {s(S_H)}, s2, 31")
    g(f"""  s_and_b32 {s(S_RG)}, s3, 1
  s_lshr_b32 {s(S_KH)}, s3, 1
  s_lshl_b32 s44, {s(S_B)}, 5
  s_add_u32 s44, s44, {s(S_H)}
  s_lshl_b32 s44, s44, 19
  s_mul_i32 s45, {s(S_B)}, 221184
  s_lshl_b32 s46, {s(S_H)}, 8
  s_waitcnt lgkmcnt(0)
  s_add_u32 s16, s4, s45
  s_addc_u32 s17, s5, 0
  s_and_b32 s17, s17, 0xffff
  s_mov_b32 s18, 221184
  s_mov_b32 s19, 0x20000
  s_add_u32 s20, s30, s46
  s_addc_u32 s21, s31, 0
  s_and_b32 s21, s21, 0xffff
  s_sub_u32 s22, {576*8192}, s46
  s_mov_b32 s23, 0x20000
  s_add_u32 s8, s6, s44
  s_addc_u32 s9, s7, 0
  s_and_b32 s9, s9, 0xffff
  s_mov_b32 s10, 0x80000
  s_mov_b32 s11, 0x20000
  s_add_u32 s12, s28, s44
  s_addc_u32 s13, s29, 0
  s_and_b32 s13, s13, 0xffff
  s_mov_b32 s14, 0x80000
  s_mov_b32 s15, 0x20000""")
    g.label("L_restart")
    g("""  v_mbcnt_lo_u32_b32 v2, -1, 0
  v_mbcnt_hi_u32_b32 v2, -1, v2
  v_lshrrev_b32 v3, 4, v2
  v_and_b32 v4, 15, v2""")
    g(f"""  v_lshrrev_b32 v5, 3, v2
  v_mul_u32_u24 v5, 1152, v5
  v_and_b32 v6, 7, v2
  v_xor_b32 v6, v6, v3
  v_lshl_add_u32 {v(XD(0))}, v6, 4, v5
  v_xor_b32 v6, 4, v6
  v_lshl_add_u32 v7, v6, 4, v5""")
    for p in range(1, 6):
        src_ = "v7" if p & 1 else v(XD(0))
        g(f"  v_add_u32 {v(XD(p))}, {p*9216 - (p&3)*1024}, {src_}")
    g(f"""  v_lshlrev_b32 v5, 2, v3
  v_xor_b32 v5, v5, v4
  v_lshlrev_b32 v5, 4, v5
  v_lshl_add_u32 {v(WD(0))}, v3, 13, v5""")
    for p in range(1, 4):
        g(f"  v_add_u32 {v(WD(p))}, {p*(4*8192-1024)}, {v(WD(0))}")
    g(f"""  s_mul_i32 {s(S_XM)}, s3, 6144
  s_mul_i32 {s(S_XSO)}, s3, {48*1152}
  s_lshl_b32 {s(S_WM)}, s3, 12
  s_add_u32 {s(S_WM)}, {s(S_WM)}, 24576
  s_lshl_b32 {s(S_WSO)}, s3, 17
  s_lshl_b32 {s(S_M0B)}, s3, 12""")
    ra, rb = cfg.get("rotab", (2, 1))
    g(f"""  s_and_b32 s44, {s(S_B)}, 3
  s_mul_i32 s44, s44, {ra}
  s_and_b32 s45, {s(S_H)}, 7
  s_mul_i32 s45, s45, {rb}
  s_add_u32 s44, s44, s45
  s_sub_u32 s45, s44, 9
  s_cmp_ge_u32 s44, 9
  s_cselect_b32 {s(S_J)}, s45, s44""")
    g(f"""  s_and_b32 s44, {s(S_B)}, 3
  s_lshl_b32 s44, s44, 2
  s_add_u32 s44, s44, s3
  s_add_u32 s44, s44, 2
  s_lshl_b32 s44, s44, 18
  v_lshrrev_b32 v5, 1, v2
  v_lshlrev_b32 v5, 13, v5
  v_and_b32 v6, 1, v2
  v_lshl_add_u32 v5, v6, 7, v5
  v_add_u32 {v(TD(0))}, s44, v5
  s_and_b32 s44, {s(S_H)}, 7
  s_lshl_b32 s44, s44, 2
  s_add_u32 s44, s44, s3
  s_mul_i32 s44, s44, {6*1152}
  s_add_u32 s44, s44, 128
  v_lshrrev_b32 v5, 3, v2
  v_mul_u32_u24 v5, 1152, v5
  v_and_b32 v6, 7, v2
  v_lshl_add_u32 v5, v6, 7, v5
  v_add_u32 {v(TD(1))}, s44, v5""")
    for p in range(4):
        g(f"""  v_add_u32 v7, {4*p}, v3
  v_xor_b32 v7, v7, v4
  v_lshlrev_b32 v7, 4, v7
  v_lshl_add_u32 {v(VKD+p)}, v3, 8, v7""")
    for p in range(2):
        g(f"""  v_add_u32 v7, {4*p}, v3
  v_lshlrev_b32 v7, 1, v7
  v_xor_b32 v7, v7, v4
  v_lshlrev_b32 v7, 4, v7
  v_lshl_add_u32 {v(VVD+p)}, v3, 8, v7""")

    def setup(g):
        g("  v_lshrrev_b32 v9, 2, v4\n  v_and_b32 v10, 3, v4")
        g(f"""  v_lshlrev_b32 v11, 2, v9
  v_xor_b32 v11, v11, v10
  v_lshlrev_b32 v11, 4, v11
  v_lshl_add_u32 v12, v3, 3, v9
  v_lshl_add_u32 v11, v12, 8, v11
  s_lshl_b32 s45, {s(S_KH)}, 7
  v_xor_b32 v11, s45, v11""")
        for sl in range(2):
            g(f"  v_xor_b32 v12, {sl*64}, v11\n  v_add_u32 {v(WA(0,sl))}, 24576, v12\n  v_add_u32 {v(WA(1,sl))}, {24576 + BB[2]}, v12")
        g(f"""  v_lshrrev_b32 v11, 1, v4
  v_xor_b32 v11, v11, v3
  v_lshlrev_b32 v11, 4, v11
  v_lshl_add_u32 v11, v4, 7, v11
  s_mul_i32 s44, {s(S_RG)}, {96*128}
  v_add_u32 v11, s44, v11
  v_mov_b32 {v(XA(0,0))}, v11
  v_xor_b32 {v(XA(0,1))}, 64, v11
  v_add_u32 {v(XA(1,0))}, {BB[2]}, {v(XA(0,0))}
  v_add_u32 {v(XA(1,1))}, {BB[2]}, {v(XA(0,1))}""")
        g(f"""  s_lshl_b32 s44, {s(S_KH)}, 13
  v_xor_b32 v8, v3, v4
  v_lshlrev_b32 v8, 4, v8
  v_lshl_add_u32 v8, v4, 8, v8
  v_xor_b32 v8, s45, v8
  v_add_u32 v8, s44, v8""")
        for ks in range(4):
            g(f"  v_xor_b32 {v(VKA+ks)}, {ks*64}, v8")
            g(f"  v_add_u32 {v(VKA+4+ks)}, 0x10000, {v(VKA+ks)}")
        g(f"""  v_and_b32 v11, 1, v3
  v_lshl_add_u32 v11, v11, 2, v9
  v_lshlrev_b32 v11, 1, v11
  v_lshrrev_b32 v12, 1, v10
  v_xor_b32 v11, v11, v12
  v_lshlrev_b32 v11, 4, v11
  v_and_b32 v12, 1, v10
  v_lshl_add_u32 v11, v12, 3, v11
  v_lshl_add_u32 v12, v3, 2, v9
  v_lshl_add_u32 v11, v12, 8, v11
  v_add_u32 v11, s44, v11
  v_add_u32 v11, 16384, v11""")
        for dt in range(8):
            g(f"  v_xor_b32 {v(VVA+dt)}, {dt*32}, v11")
            g(f"  v_add_u32 {v(VVA+8+dt)}, 0x10000, {v(VVA+dt)}")
        g(f"""  v_cmp_eq_u32 vcc, 0, v10
  v_mov_b32 v12, 0x3f803f80
  v_cndmask_b32 {v(VONE)}, 0, v12, vcc
  v_mov_b32 {v(VONE+1)}, {v(VONE)}
  v_mov_b32 {v(VONE+2)}, {v(VONE)}
  v_mov_b32 {v(VONE+3)}, {v(VONE)}""")
        sc = f2u(math.log2(math.e) / math.sqrt(128.0))
        g(f"""  v_lshlrev_b32 {v(VL16)}, 4, v2
  s_mul_i32 s44, s3, 12288
  s_add_u32 s44, s44, {WB}
  v_add_u32 {v(EXW)}, s44, {v(VL16)}
  s_xor_b32 s45, s3, 2
  s_mul_i32 s44, s45, 12288
  s_add_u32 s44, s44, {WB}
  v_add_u32 {v(EXR)}, s44, {v(VL16)}
  s_mov_b32 {s(S_SC)}, {hex(sc)}
  s_mov_b32 {s(S_SC+1)}, {hex(sc)}
  s_add_u32 {s(S_KOFF)}, {s(S_M0B)}, {4*16384}
  s_add_u32 {s(S_VOFF)}, {s(S_M0B)}, {3*16384}""")
    cfg["_setup"] = setup
    qproj(g)
    g.stamp(1)
    g.cstamp(5)
    g(f"  s_cmp_eq_u32 {s(S_PASS)}, 0\n  s_cbranch_scc0 L_maxpass")
    for ks in range(4):
        for kt in range(2):
            g("  " + kread(kt, ks, 3))
    for i in range(24): g(f"  v_mov_b32 {v(VL+i)}, 0")
    for i in range(8): g(f"  v_mov_b32 {v(P(1)+i)}, 0")
    g("  s_waitcnt lgkmcnt(0)")
    for ks in range(4):
        for qt in range(6):
            c = "0" if ks == 0 else v(NM(qt), 4)
            g(f"  {MF} {v(NM(qt),4)}, {a(KF(0,ks),4)}, {v(Q(qt,ks),4)}, {c}")
    g("  s_nop 7")
    def rowmax_finish():
        for qt in range(6): g(f"  v_mov_b32 {v(NM(qt)+1)}, {v(NM(qt))}")
        g("  s_nop 1")
        for qt in range(6): g(f"  v_permlane32_swap_b32 {v(NM(qt))}, {v(NM(qt)+1)}")
        g("  s_nop 1")
        for qt in range(6): g(f"  v_max_f32 {v(NM(qt))}, {v(NM(qt))}, {v(NM(qt)+1)}")
        for qt in range(6): g(f"  v_mov_b32 {v(NM(qt)+1)}, {v(NM(qt))}")
        g("  s_nop 1")
        for qt in range(6): g(f"  v_permlane16_swap_b32 {v(NM(qt))}, {v(NM(qt)+1)}")
        g("  s_nop 1")
        for qt in range(6): g(f"  v_max_f32 {v(NM(qt))}, {v(NM(qt))}, {v(NM(qt)+1)}")
        for qt in range(6):
            g(f"  v_sub_f32 {v(NM(qt))}, 0, {v(NM(qt))}")
        for qt in range(6):
            for r in range(1, 4): g(f"  v_mov_b32 {v(NM(qt)+r)}, {v(NM(qt))}")
    for qt in range(6):
        g(f"  v_max3_f32 {v(NM(qt))}, {v(NM(qt))}, {v(NM(qt)+1)}, {v(NM(qt)+2)}")
    for qt in range(6):
        g(f"  v_max_f32 {v(NM(qt))}, {v(NM(qt))}, {v(NM(qt)+3)}")
    rowmax_finish()
    g.label("L_join")
    g.tstamp(26)
    g("  s_nop 1")
    for m in qk_mfmas(0, 0): g("  " + m)
    g(f"  s_mov_b32 {s(S_CNT)}, 0")
    g.label("L_loop")
    for t in range(4):
        g(f"  s_waitcnt vmcnt({cfg.get('vm',16)})")
        g("  s_barrier")
        if cfg.get("trace"):
            g("  s_memrealtime s[76:77]\n  s_memtime s[80:81]")
            g(f"  s_lshl_b32 s78, {s(S_CNT)}, 2\n  s_add_u32 s78, s78, {t}")
        for j in range(3):
            stage(g, t, j)
    g(f"  s_add_u32 {s(S_CNT)}, {s(S_CNT)}, 1\n  s_cmp_lt_u32 {s(S_CNT)}, 8\n  s_cbranch_scc1 L_loop")
    for m in pv_mfmas(2, 1): g("  " + m)
    g.stamp(2)
    g.cstamp(6)
    g(f"""  v_lshrrev_b32 {v(VX)}, 2, {v(VL16)}
  s_mul_i32 s44, s3, 3072
  s_add_u32 s44, s44, {STATS}
  v_add_u32 {v(VX+1)}, s44, {v(VX)}
  s_xor_b32 s45, s3, 2
  s_mul_i32 s44, s45, 3072
  s_add_u32 s44, s44, {STATS}
  v_add_u32 {v(VX+2)}, s44, {v(VX)}
  s_nop 4""")
    for qt in range(6):
        g(f"  ds_write_b32 {v(VX+1)}, {v(NM(qt))} offset:{qt*512}")
        g(f"  ds_write_b32 {v(VX+1)}, {v(L(qt))} offset:{qt*512+256}")
    g("  s_waitcnt vmcnt(0) lgkmcnt(0)\n  s_barrier")
    for qt in range(6):
        g(f"  ds_read_b32 {v(S(0)+2*qt)}, {v(VX+2)} offset:{qt*512}")
        g(f"  ds_read_b32 {v(S(0)+2*qt+1)}, {v(VX+2)} offset:{qt*512+256}")
    if cfg.get("wopf", 1):
        g(f"""  s_mov_b32 {s(SWO)}, {s(S_WOP)}
  s_and_b32 {s(SWO+1)}, {s(S_WOP+1)}, 0xffff
  s_mov_b32 {s(SWO+2)}, {4096*1152}
  s_mov_b32 {s(SWO+3)}, 0x20000
  s_mul_i32 s44, s2, 18432
  s_mul_i32 s45, s3, 4608
  s_add_u32 s44, s44, s45""")
        for i in range(5):
            g(f"  buffer_load_dwordx4 {v(VX+24,4)}, {v(VL16)}, {s(SWO,4)}, s44 offen offset:{min(1024*i, 3584)}")
    g(f"""  s_mul_i32 s44, s3, 24576
  v_add_u32 {v(VX+8)}, s44, {v(VL16)}
  s_xor_b32 s45, s3, 2
  s_mul_i32 s44, s45, 24576
  v_add_u32 {v(VX+9)}, s44, {v(VL16)}
  s_mul_i32 s44, {s(S_RG)}, 6
  s_mul_i32 s45, {s(S_B)}, 12
  s_add_u32 s44, s44, s45
  s_lshl_b32 s44, s44, 5
  s_add_u32 s44, s44, {s(S_H)}
  s_lshl_b32 {s(S_T2)}, s44, 12
  s_mov_b32 s24, s32
  s_and_b32 s25, s33, 0xffff
  s_mov_b32 s26, {8*12*128*1024}
  s_mov_b32 s27, 0x20000
  s_waitcnt lgkmcnt(0)""")
    LS = VX + 6
    g(f"  v_add_f32 {v(LS)}, {v(L(0))}, {v(L(1))}")
    for qt in range(2, 6): g(f"  v_add_f32 {v(LS)}, {v(LS)}, {v(L(qt))}")
    for qt in range(6):
        nmo, nmp, lp = NM(qt), S(0) + 2 * qt, S(0) + 2 * qt + 1
        t, fo, fp = VX + 3, VX + 4, VX + 5
        go, gp = S(0) + 0, 0
        g(f"""  v_min_f32 {v(t)}, {v(nmo)}, {v(nmp)}
  v_sub_f32 {v(fo)}, {v(t)}, {v(nmo)}
  v_sub_f32 {v(fp)}, {v(t)}, {v(nmp)}
  v_exp_f32 {v(fo)}, {v(fo)}
  v_exp_f32 {v(fp)}, {v(fp)}
  s_nop 0
  v_mul_f32 {v(t)}, {v(L(qt))}, {v(fo)}
  v_fma_f32 {v(t)}, {v(lp)}, {v(fp)}, {v(t)}
  v_rcp_f32 {v(t)}, {v(t)}
  s_nop 0
  v_mul_f32 {v(NM(qt))}, {v(fo)}, {v(t)}
  v_mul_f32 {v(NM(qt)+2)}, {v(fp)}, {v(t)}""")
    for qt in range(6):
        go, gp = 96 + 4 * qt, 96 + 4 * qt + 2
        g(f"""  v_mov_b32 {v(go)}, {v(NM(qt))}
  v_mov_b32 {v(go+1)}, {v(NM(qt))}
  v_mov_b32 {v(gp)}, {v(NM(qt)+2)}
  v_mov_b32 {v(gp+1)}, {v(NM(qt)+2)}""")
    g(f"  s_cmp_eq_u32 {s(S_KH)}, 0\n  s_cbranch_scc0 L_ep1")
    epilogue_variant(g, 0)
    g("  s_branch L_ep_done")
    g.label("L_ep1")
    epilogue_variant(g, 1)
    g.label("L_ep_done")
    CH = VX + 10
    g(f"""  v_add_f32 {v(CH)}, {v(CH)}, {v(CH+1)}
  v_sub_f32 {v(CH)}, {v(CH)}, {v(CH)}
  v_cmp_u_f32 vcc, {v(CH)}, {v(CH)}
  s_mov_b64 s[46:47], vcc
  v_mov_b32 {v(CH+1)}, {hex(f2u(LTHR))}
  v_cmp_nle_f32 vcc, {v(LS)}, {v(CH+1)}
  s_or_b64 s[46:47], s[46:47], vcc
  s_cmp_lg_u64 s[46:47], 0
  s_cselect_b32 s44, 1, 0
  s_lshl_b32 s45, s3, 2
  s_add_u32 s45, s45, {FLAGS}
  v_mov_b32 {v(CH)}, s44
  v_mov_b32 {v(CH+1)}, s45
  ds_write_b32 {v(CH+1)}, {v(CH)}
  s_waitcnt lgkmcnt(0)
  s_barrier
  v_mov_b32 {v(CH+1)}, {FLAGS}
  ds_read_b128 {v(VX+12,4)}, {v(CH+1)}
  s_waitcnt lgkmcnt(0)
  v_or3_b32 {v(CH)}, {v(VX+12)}, {v(VX+13)}, {v(VX+14)}
  v_or_b32 {v(CH)}, {v(CH)}, {v(VX+15)}
  s_nop 0
  v_readfirstlane_b32 s44, {v(CH)}
  s_xor_b32 s45, {s(S_PASS)}, 1
  s_and_b32 s44, s44, s45
  s_cmp_lg_u32 s44, 0
  s_cbranch_scc1 L_fallback""")
    g("  s_waitcnt vmcnt(0)")
    if cfg.get("dbgout"):
        g.stamp(7)
        g(f"""  s_add_u32 s30, s32, {hex(STAMP_OFF)}
  s_addc_u32 s31, s33, 0
  s_and_b32 s44, s2, 63
  s_cmp_eq_u32 s44, {cfg.get("dbgout")-1}
  s_cbranch_scc0 L_k1_end
  s_cmp_eq_u32 s3, 0
  s_cbranch_scc0 L_k1_end
  s_lshr_b32 s44, s2, 6
  s_lshl_b32 s44, s44, 4
  s_sub_u32 s62, s62, s60
  s_sub_u32 s64, s64, s60
  s_sub_u32 s74, s74, s60
  s_sub_u32 s72, s72, s70
  v_mov_b32 v20, s62
  v_mov_b32 v21, s64
  v_mov_b32 v22, s74
  v_mov_b32 v23, s72
  v_mov_b32 v24, s44
  v_cmp_eq_u32 vcc, 0, {v(VL16)}
  s_and_saveexec_b64 s[46:47], vcc
  s_waitcnt lgkmcnt(0)
  global_store_dwordx4 v24, v[20:23], s[30:31]
  v_mov_b32 v20, s60
  v_lshrrev_b32 v24, 2, v24
  global_store_dword v24, v20, s[30:31] offset:64
  s_waitcnt vmcnt(0)""")
    elif cfg.get("stamps"):
        g.stamp(7)
        g(f"""  s_add_u32 s30, s32, {hex(STAMP_OFF)}
  s_addc_u32 s31, s33, 0
  s_lshl_b32 s44, s2, 6
  s_add_u32 s30, s30, s44
  s_addc_u32 s31, s31, 0
  v_mov_b32 v24, 0
  s_cmp_eq_u32 s3, {cfg.get("stampwave", 0)}
  s_cbranch_scc0 L_k1_end
  v_cmp_eq_u32 vcc, 0, {v(VL16)}
  s_and_saveexec_b64 s[46:47], vcc
  s_cbranch_execz L_k1_end""")
        for i in (0, 1, 2, 3, 5, 6, 7):
            g(f"  v_mov_b32 v20, {s(S_STAMP+2*i)}\n  v_mov_b32 v21, {s(S_STAMP+2*i+1)}\n  global_store_dwordx2 v24, v[20:21], s[30:31] offset:{8*i}\n  s_nop 1")
        g("  s_waitcnt vmcnt(0)")
        if cfg.get("trace") or cfg.get("qtrace"):
            g(f"""  s_mov_b64 exec, -1
  s_add_u32 s30, s32, {hex(STAMP_OFF - 0xc000)}
  s_addc_u32 s31, s33, 0
  s_lshl_b32 s44, s2, 7
  s_add_u32 s30, s30, s44
  s_addc_u32 s31, s31, 0
  v_lshrrev_b32 v24, 2, {v(VL16)}
  v_cmp_gt_u32 vcc, 128, v24
  s_and_saveexec_b64 s[46:47], vcc
  global_store_dword v24, v250, s[30:31]
  s_sub_u32 s30, s30, 0x8000
  s_subb_u32 s31, s31, 0
  global_store_dword v24, v251, s[30:31]
  s_waitcnt vmcnt(0)""")
    g.label("L_k1_end")
    g("  s_endpgm")
    g.label("L_fallback")
    g(f"""  s_waitcnt vmcnt(0) lgkmcnt(0)
  s_mov_b32 {s(S_PASS)}, 1
  s_barrier
  s_branch L_restart""")
    g.label("L_maxpass")
    for i in range(24): g(f"  v_mov_b32 {v(VL+i)}, 0")
    for i in range(8): g(f"  v_mov_b32 {v(P(1)+i)}, 0")
    for qt in range(6): g(f"  v_mov_b32 {v(NM(qt))}, 0xff800000")
    g(f"""  s_mov_b32 {s(S_CNT)}, 0
  s_mov_b32 {s(S_T1)}, {s(S_M0B)}
  s_waitcnt vmcnt(0) lgkmcnt(0)
  s_barrier""")
    g.label("L_mp_loop")
    g(f"  s_add_u32 m0, {s(S_M0B)}, {3*SLOT}\n  s_nop 0")
    for p in range(4):
        g(f"  buffer_load_dwordx4 {v(VKD+p)}, {s(SK,4)}, {s(S_T1)} offen offset:{1024*p} lds")
    g("  s_waitcnt vmcnt(0)\n  s_barrier")
    for ks in range(4):
        for kt in range(2):
            g("  " + kread(kt, ks, 3))
    g("  s_waitcnt lgkmcnt(0)\n  s_barrier")
    for j in range(3):
        for m in qk_mfmas(j, 0, czero=True): g("  " + m)
        g("  s_nop 7")
        for qi in range(2):
            qt = 2 * j + qi
            for kt in range(2):
                b = S(0, kt, qi)
                g(f"  v_max3_f32 {v(NM(qt))}, {v(NM(qt))}, {v(b)}, {v(b+1)}")
                g(f"  v_max3_f32 {v(NM(qt))}, {v(NM(qt))}, {v(b+2)}, {v(b+3)}")
        g("  s_nop 1")
    g(f"""  s_add_u32 {s(S_T1)}, {s(S_T1)}, 16384
  s_add_u32 {s(S_CNT)}, {s(S_CNT)}, 1
  s_cmp_lt_u32 {s(S_CNT)}, 32
  s_cbranch_scc1 L_mp_loop""")
    rowmax_finish()
    g(f"  s_add_u32 m0, {s(S_M0B)}, {3*SLOT}\n  s_nop 0")
    for p in range(4):
        g(f"  buffer_load_dwordx4 {v(VKD+p)}, {s(SK,4)}, {s(S_M0B)} offen offset:{1024*p} lds")
    g("  s_waitcnt vmcnt(0)\n  s_barrier")
    for ks in range(4):
        for kt in range(2):
            g("  " + kread(kt, ks, 3))
    g("  s_waitcnt lgkmcnt(0)\n  s_branch L_join")

def gen_k2(g):
    cfg = g.cfg
    NPF = cfg.get("k2_depth", 6)
    RING = 8
    g(f".globl {K2}\n.p2align 8\n.type {K2},@function\n{K2}:")
    g("  s_cmp_ge_u32 s2, 216\n  s_cbranch_scc1 L_k2_end")
    g("  s_load_dwordx4 s[4:7], s[0:1], 32\n  s_load_dwordx2 s[32:33], s[0:1], 56")
    if cfg.get("stamps"): g(f"  s_memrealtime {s(S_STAMP,2)}")
    g("""  v_lshrrev_b32 v1, 6, v0
  v_and_b32 v2, 63, v0
  s_and_b32 s34, s2, 7                 ; b
  v_readfirstlane_b32 s3, v1
  s_lshr_b32 s35, s2, 3                ; qp*9+nt
  s_mul_i32 s36, s35, 57
  s_lshr_b32 s36, s36, 9               ; qp
  s_mul_i32 s37, s36, 9
  s_sub_u32 s37, s35, s37              ; nt
  v_lshrrev_b32 v3, 4, v2
  v_and_b32 v4, 15, v2
  v_lshlrev_b32 v10, 4, v2""")
    g("""  v_lshrrev_b32 v7, 3, v2
  v_and_b32 v8, 7, v2
  v_lshrrev_b32 v9, 1, v7
  v_and_b32 v9, 3, v9
  v_lshlrev_b32 v9, 1, v9
  v_xor_b32 v8, v8, v9
  v_lshlrev_b32 v8, 4, v8
  v_mul_u32_u24 v7, 1152, v7
  v_add_u32 v11, v7, v8
  v_add_u32 v12, 8192, v11
  v_add_u32 v13, 16384, v11
  v_add_u32 v14, 24576, v11""")
    g("""  s_mul_i32 s44, s34, 12
  s_lshl_b32 s45, s36, 2
  s_add_u32 s44, s44, s45
  s_lshl_b32 s44, s44, 17
  s_lshl_b32 s45, s3, 15
  s_add_u32 s38, s44, s45""")
    g(f"  s_mul_i32 s40, s3, {1024*1152}")
    g("  s_lshl_b32 s41, s3, 15")
    g("  s_waitcnt lgkmcnt(0)")
    g(f"""  s_lshl_b32 s44, s37, 7
  s_add_u32 s8, s4, s44
  s_addc_u32 s9, s5, 0
  s_and_b32 s9, s9, 0xffff
  s_sub_u32 s10, {4096*1152}, s44
  s_mov_b32 s11, 0x20000
  s_mov_b32 s12, s32
  s_and_b32 s13, s33, 0xffff
  s_mov_b32 s14, {8*12*128*1024}
  s_mov_b32 s15, 0x20000
  s_mov_b32 s16, s6
  s_and_b32 s17, s7, 0xffff
  s_mov_b32 s18, {8*192*1152}
  s_mov_b32 s19, 0x20000""")
    ACC = lambda mt, nt: 32 + (mt * 4 + nt) * 4
    NB = NPF + 1
    BF = lambda k, nt: 96 + ((k % NB) * 4 + nt) * 4
    AFB = 96 + NB * 16
    AF = lambda k, mt: AFB + ((k & 1) * 4 + mt) * 4
    assert AFB + 32 <= 256
    def issue(k):
        L_ = []
        L_.append(f"s_add_u32 m0, s41, {(k % RING)*4096}")
        L_.append(f"s_add_u32 s44, s40, {k*32*1152}")
        for p in range(4):
            L_.append(f"buffer_load_dwordx4 {v(11+p)}, s[8:11], s44 offen offset:{1024*p} lds")
        for nt in range(4):
            L_.append(f"s_add_u32 s45, s38, {nt*131072 + k*1024}")
            L_.append(f"buffer_load_dwordx4 {v(BF(k,nt),4)}, v10, s[12:15], s45 offen")
        return L_
    def areads(k):
        L_ = []
        for mt in range(4):
            for half in range(2):
                L_.append(f"ds_read_b64_tr_b16 {v(AF(k,mt)+2*half,2)}, {v(16+mt)} offset:{(k%RING)*4096 + half*2048}")
        return L_
    assert NPF + 1 <= RING
    for k in range(NPF):
        for ins in issue(k): g("  " + ins)
    g("""  v_lshrrev_b32 v7, 2, v4             ; r
  v_and_b32 v8, 3, v4                  ; c
  v_lshl_add_u32 v9, v3, 2, v7         ; row = 4g+r
  v_lshrrev_b32 v5, 1, v9
  v_and_b32 v5, 3, v5
  v_lshlrev_b32 v5, 1, v5
  v_lshrrev_b32 v6, 1, v8
  v_xor_b32 v5, v5, v6
  v_lshlrev_b32 v5, 4, v5
  v_and_b32 v6, 1, v8
  v_lshl_add_u32 v5, v6, 3, v5
  v_lshl_add_u32 v5, v9, 7, v5
  v_add_u32 v16, s41, v5
  v_xor_b32 v17, 32, v16
  v_xor_b32 v18, 64, v16
  v_xor_b32 v19, 96, v16""")
    g(f"  s_waitcnt vmcnt({8*(NPF-1)})")
    for ins in areads(0): g("  " + ins)
    NK = 32
    for k in range(NK):
        nxt = issue(k + NPF) if k + NPF < NK else []
        outstanding_after = min(NK, k + NPF + 1) - (k + 2)
        mf = []
        for mt in range(4):
            for nt in range(4):
                c = "0" if k == 0 else v(ACC(mt, nt), 4)
                mf.append(f"{MF} {v(ACC(mt,nt),4)}, {v(AF(k,mt),4)}, {v(BF(k,nt),4)}, {c}")
        g("  s_waitcnt lgkmcnt(0)")
        spread(g, mf[:8], nxt)
        if k + 1 < NK:
            g(f"  s_waitcnt vmcnt({8*max(0,outstanding_after)})")
            spread(g, mf[8:], areads(k + 1))
        else:
            spread(g, mf[8:], [])
    g.stamp(2)
    PITCH = 272
    g("  s_nop 7\n  s_barrier")
    g(f"""  v_mul_u32_u24 v7, {PITCH}, v4
  v_lshl_add_u32 v7, v3, 4, v7
  s_mul_i32 s45, s3, {64*PITCH}
  v_add_u32 v7, s45, v7""")
    for mt in range(4):
        for nt in range(4):
            g(f"  ds_write_b128 v7, {v(ACC(mt,nt),4)} offset:{nt*16*PITCH + mt*64}")
    g("  s_waitcnt lgkmcnt(0)\n  s_barrier")
    g(f"""  v_lshrrev_b32 v7, 3, v0
  v_and_b32 v8, 7, v0
  v_mul_u32_u24 v9, {PITCH}, v7
  v_lshl_add_u32 v9, v8, 5, v9""")
    for i in range(2):
        for w in range(4):
            for hq in range(2):
                g(f"  ds_read_b128 {v(96 + ((i*4+w)*2+hq)*4, 4)}, v9 offset:{i*32*PITCH + w*64*PITCH + hq*16}")
    g(f"""  s_mul_i32 s45, s34, 192
  s_lshl_b32 s46, s36, 6
  s_add_u32 s45, s45, s46
  s_mul_i32 s45, s45, 1152
  s_lshl_b32 s46, s37, 7
  s_add_u32 s45, s45, s46
  v_mul_u32_u24 v7, 1152, v7
  v_lshl_add_u32 v7, v8, 4, v7""")
    for i in range(2):
        g(f"  s_waitcnt lgkmcnt({8 if i == 0 else 0})")
        b0 = 96 + i * 32
        for w in range(1, 4):
            for e in range(0, 8, 2):
                g(f"  v_pk_add_f32 {v(b0+e,2)}, {v(b0+e,2)}, {v(b0+w*8+e,2)}")
        for e in range(4):
            g(f"  v_cvt_pk_bf16_f32 {v(b0+e)}, {v(b0+2*e)}, {v(b0+2*e+1)}")
        g(f"  s_add_u32 s46, s45, {i*32*1152}")
        g(f"  buffer_store_dwordx4 {v(b0,4)}, v7, s[16:19], s46 offen")
    g("  s_waitcnt vmcnt(0)")
    if cfg.get("dbgout"):
        g.stamp(7)
        g(f"""  s_cmp_eq_u32 s2, 0
  s_cbranch_scc0 L_k2_end
  s_cmp_eq_u32 s3, 0
  s_cbranch_scc0 L_k2_end
  s_load_dwordx2 s[28:29], s[0:1], 48
  s_add_u32 s30, s32, {hex(STAMP_OFF)}
  s_addc_u32 s31, s33, 0
  v_lshlrev_b32 v24, 2, v2
  global_load_dword v20, v24, s[30:31]
  global_load_dword v21, v24, s[30:31] offset:64
  s_waitcnt vmcnt(0) lgkmcnt(0)
  v_readfirstlane_b32 s44, v21
  s_nop 3
  s_sub_u32 s60, s60, s44
  s_sub_u32 s74, s74, s44
  v_writelane_b32 v20, s60, 12
  v_writelane_b32 v20, s74, 13
  v_cmp_gt_u32 vcc, 64, v24
  s_and_saveexec_b64 s[46:47], vcc
  global_store_dword v24, v20, s[28:29]
  s_waitcnt vmcnt(0)""")
    if cfg.get("stamps") and not cfg.get("dbgout"):
        g.stamp(7)
        g(f"""  s_add_u32 s30, s32, {hex(STAMP_OFF - 0x4000)}
  s_addc_u32 s31, s33, 0
  s_lshl_b32 s44, s2, 6
  s_add_u32 s30, s30, s44
  s_addc_u32 s31, s31, 0
  v_mov_b32 v24, 0
  v_cmp_eq_u32 vcc, 0, v0
  s_and_saveexec_b64 s[46:47], vcc
  s_cbranch_execz L_k2_end""")
        for i in (0, 2, 7):
            g(f"  v_mov_b32 v20, {s(S_STAMP+2*i)}\n  v_mov_b32 v21, {s(S_STAMP+2*i+1)}\n  global_store_dwordx2 v24, v[20:21], s[30:31] offset:{8*i}\n  s_nop 1")
        g("  s_waitcnt vmcnt(0)")
    g.label("L_k2_end")
    g("  s_endpgm")

def generate(cfg):
    g = Gen(cfg)
    g(HEADER.rstrip())
    if cfg.get("only") != 2:
        g(f"; @launch kernel={K1} grid=(256,1,1) block=(256,1,1) lds=163840")
    if cfg.get("only") != 1:
        g(f"; @launch kernel={K2} grid=(216,1,1) block=(256,1,1) lds=131072")
    g('.amdgcn_target "amdgcn-amd-amdhsa--gfx950"\n.text')
    gen_k1(g)
    gen_k2(g)
    g('.section .rodata,"a"\n.p2align 6')
    g(kernel_desc(K1, 512, 96, 256))
    g(".p2align 6")
    g(kernel_desc(K2, 256, 96, 256))
    return g.text()

if __name__ == "__main__":
    import json
    out = sys.argv[1]
    cfg = json.loads(sys.argv[2]) if len(sys.argv) > 2 else {}
    open(out, "w").write(generate(cfg))
```

```python
import sys, math, struct
from asmlib import *

def f2u(x): return struct.unpack("<I", struct.pack("<f", x))[0]
def v(b, n=1): return f"v{b}" if n == 1 else f"v[{b}:{b+n-1}]"
def a(b, n=1): return f"a{b}" if n == 1 else f"a[{b}:{b+n-1}]"
def s(b, n=1): return f"s{b}" if n == 1 else f"s[{b}:{b+n-1}]"
MF = "v_mfma_f32_16x16x32_bf16"

K1 = "attn_fused_kernel"
K2 = "outproj_kernel"

VQ = 0
VS = 96
VP = 128
VNM = 144
VL = 168
VONE = 192
VKA = 196
VVA = 204
VKD = 220
VVD = 224
VL16 = 226
VX = 228
AO = 0
AK = 192
AV = 224

def Q(qt, ks): return VQ + (qt * 4 + ks) * 4
def S(p, kt=0, qi=0): return VS + 16 * p + (kt * 2 + qi) * 4
def P(p, qi=0): return VP + 8 * p + 4 * qi
def NM(qt): return VNM + 4 * qt
def L(qt): return VL + 4 * qt
def O(qt, dt): return AO + (qt * 8 + dt) * 4
def KF(kt, ks): return AK + (ks * 2 + kt) * 4
def VF(dt): return AV + 4 * dt

SK, SV, SX, SW, SO = 8, 12, 16, 20, 24
S_B, S_H, S_RG, S_KH = 34, 35, 36, 37
S_KOFF, S_VOFF, S_CNT, S_PASS, S_M0B = 38, 39, 40, 41, 43
S_T0, S_T1, S_T2, S_T3 = 44, 45, 46, 47
S_SC = 48
S_WM, S_XM, S_XSO, S_WSO = 50, 51, 54, 55
S_J = 56
S_STAMP = 60
SWO = 84
S_WOP = 58
S_TK, S_TILE = 92, 93
TKV, TKO, TKD, RDV = 248, 249, 247, 246
S_FLP = 94
FLOFF = 0x1000000

SLOT = 32768
WB = 114688
STATS = 131072
FLAGS = 163840 - 64
STAMP_OFF = 0x1fffc000
LTHR = 2.0 ** 40

class Gen(Asm):
    def __init__(self, cfg):
        super().__init__()
        self.cfg = cfg
    def stamp(self, i):
        if self.cfg.get("stamps"):
            self(f"  s_memrealtime {s(S_STAMP + 2*i, 2)}\n  s_waitcnt lgkmcnt(0)")
    def tstamp(self, i):
        if self.cfg.get("qtrace"):
            ins = "s_memtime" if self.cfg.get("qclk") else "s_memrealtime"
            self(f"  {ins} s[76:77]\n  s_waitcnt lgkmcnt(0)\n  v_writelane_b32 v250, s76, {i}")
    def cstamp(self, i):
        if self.cfg.get("stamps"):
            self(f"  s_memtime {s(S_STAMP + 2*i, 2)}\n  s_waitcnt lgkmcnt(0)")

class VM:
    def __init__(self): self.ops = []
    def issue(self, tag, n=1): self.ops += [tag] * n
    def wait_for(self, *tags):
        last = -1
        for i, t in enumerate(self.ops):
            if t in tags: last = i
        n = len(self.ops) - 1 - last
        return min(n, 63)

def spread(g, mfmas, extra, cap=2):
    n = len(mfmas)
    per = [[] for _ in range(n)]
    for idx, ins in enumerate(extra):
        per[min(n - 1, idx * n // max(1, len(extra)))].append(ins)
    for i in range(n):
        g("  " + mfmas[i])
        for ins in per[i]: g("  " + ins)

def dma_k(slot):
    L_ = [(f"s_add_u32 m0, {s(S_M0B)}, {slot*SLOT}", 4)]
    L_.append(("s_nop 0", 0))
    for p in range(4):
        L_.append((f"buffer_load_dwordx4 {v(VKD+p)}, {s(SK,4)}, {s(S_KOFF)} offen offset:{1024*p} nt lds", 4))
    L_.append((f"s_add_u32 {s(S_KOFF)}, {s(S_KOFF)}, 16384", 4))
    return L_
def dma_v(slot):
    L_ = [(f"s_add_u32 m0, {s(S_M0B)}, {slot*SLOT+16384}", 4)]
    L_.append(("s_nop 0", 0))
    for p in range(4):
        L_.append((f"buffer_load_dwordx4 {v(VVD+(p&1))}, {s(SV,4)}, {s(S_VOFF)} offen offset:{1024*p} nt lds", 4))
    L_.append((f"s_add_u32 {s(S_VOFF)}, {s(S_VOFF)}, 16384", 4))
    return L_

def kread(kt, ks, slot):
    base = VKA + (0 if slot < 2 else 4) + ks
    return f"ds_read_b128 {a(KF(kt,ks),4)}, {v(base)} offset:{(slot&1)*SLOT + kt*4096}"
def vread(dt, half, slot):
    base = VVA + (0 if slot < 2 else 8) + dt
    return f"ds_read_b64_tr_b16 {a(VF(dt)+2*half,2)}, {v(base)} offset:{(slot&1)*SLOT + half*4096}"

def qk_mfmas(j, sp, czero=False):
    L_ = []
    for ks in range(4):
        for kt in range(2):
            for qi in range(2):
                d = S(sp, kt, qi)
                c = (("0" if czero else v(NM(2*j+qi), 4)) if ks == 0 else v(d, 4))
                L_.append(f"{MF} {v(d,4)}, {a(KF(kt,ks),4)}, {v(Q(2*j+qi,ks),4)}, {c}")
    return L_
def pv_mfmas(j, pp):
    L_ = []
    for dt in range(8):
        for qi in range(2):
            d = O(2*j+qi, dt)
            L_.append(f"{MF} {a(d,4)}, {a(VF(dt),4)}, {v(P(pp,qi),4)}, {a(d,4)}")
    for qi in range(2):
        d = L(2*j+qi)
        L_.append(f"{MF} {v(d,4)}, {v(VONE,4)}, {v(P(pp,qi),4)}, {v(d,4)}")
    return L_

def softmax_items(p):
    exps = []; cvts = []
    for qi in range(2):
        for kt in range(2):
            for h in range(2):
                r0 = S(p, kt, qi) + 2 * h
                exps.append(f"v_exp_f32 {v(r0)}, {v(r0)}")
                exps.append(f"v_exp_f32 {v(r0+1)}, {v(r0+1)}")
                cvts.append((f"v_cvt_pk_bf16_f32 {v(P(p,qi)+2*kt+h)}, {v(r0)}, {v(r0+1)}", len(exps)))
    return exps, cvts

def stage(g, t, j):
    cfg = g.cfg
    u = 3 * t + j
    par = u & 1
    jn, jp = (j + 1) % 3, (j + 2) % 3
    slot = t & 3
    mf = qk_mfmas(jn, par ^ 1) + pv_mfmas(jp, par ^ 1)
    n = len(mf)
    fixed = {i: [] for i in range(n)}
    pre = []
    dslot = (slot + 3) & 3
    kpos = cfg.get("kdma", (0, 0)); vpos = cfg.get("vdma", (1, 24))
    def place(L_, start):
        grp = [L_[0:3]] + [[x] for x in L_[3:]]
        for i, x in enumerate(grp):
            fixed[min(n - 1, start + i)] += x
    if j == 0:
        for dt in range(8):
            fixed[16 + 2 * dt + 1] += [(vread(dt, 0, slot), 4), (vread(dt, 1, slot), 4)]
    elif j == 1:
        fixed[15] += [("s_waitcnt lgkmcnt(0)", 4)]
        i = 16
        for ks in range(4):
            for kt in range(2):
                fixed[i] += [(kread(kt, ks, slot), 4)]; i += 1
    elif j == 2:
        pre.append("s_waitcnt lgkmcnt(0)")
    if j == kpos[0]: place(dma_k(dslot), kpos[1])
    if j == vpos[0]: place(dma_v(dslot), vpos[1])
    if cfg.get("nodma"):
        fixed = {k: [x for x in L_ if not x[0].startswith("buffer_load")] for k, L_ in fixed.items()}
    exps, cvts = softmax_items(par)
    if cfg.get("nosm"): exps, cvts = [], []
    for ins in pre: g("  " + ins)
    if j == 2 and cfg.get("trace"):
        g("  s_mov_b32 s79, m0\n  s_mov_b32 m0, s78\n  s_nop 0\n  v_writelane_b32 v250, s76, m0\n  v_writelane_b32 v251, s80, m0\n  s_mov_b32 m0, s79\n  s_nop 0")
    ei = ci = 0
    for i in range(n):
        g("  " + mf[i])
        free = 8
        last_was_exp = False
        for ins, c in fixed[i]:
            g("  " + ins); free -= c
        emitted_e_at_start = ei
        while True:
            if ei < len(exps) and free >= 8:
                g("  " + exps[ei]); ei += 1; free -= 8; last_was_exp = True
            elif ci < len(cvts) and free >= 4 and cvts[ci][1] <= emitted_e_at_start and (ei == len(exps) or free < 8):
                g("  " + cvts[ci][0]); ci += 1; free -= 4
            else:
                break
        if i == n - 1:
            if ei < len(exps) or ci < len(cvts):
                while ei < len(exps):
                    g("  " + exps[ei]); ei += 1
                g("  s_nop 0")
                while ci < len(cvts):
                    g("  " + cvts[ci][0]); ci += 1

BB = (0, 40960, 114688)
XA = lambda hi, st: VX + hi * 2 + st
WA = lambda hi, sl: VX + 4 + hi * 2 + sl
XD = lambda p: VX + 8 + p
WD = lambda p: VX + 14 + p
TD = lambda i: VX + 18 + i
EXW, EXR = 252, 253
def qproj(g):
    cfg = g.cfg
    AF = lambda buf, mt: buf * 16 + mt * 4
    BF = lambda buf, qt: 32 + buf * 24 + qt * 4
    ACC = lambda mt, qt: 96 + (mt * 6 + qt) * 4
    xf = cfg.get("xflag", ""); wf = cfg.get("wflag", ""); tf = cfg.get("tflag", "")
    vm = VM()
    def sload(k):
        L_ = []
        bb = BB[k % 3]
        if cfg.get("rot", 1):
            if k > 0:
                L_.append(f"s_add_u32 {s(S_J)}, {s(S_J)}, 1")
                L_.append(f"s_cmp_eq_u32 {s(S_J)}, 9")
                L_.append(f"s_cselect_b32 {s(S_J)}, 0, {s(S_J)}")
            L_.append(f"s_lshl_b32 {s(S_T1)}, {s(S_J)}, 19")
            L_.append(f"s_add_u32 m0, {s(S_WM)}, {bb}")
            L_.append(f"s_add_u32 {s(S_T1)}, {s(S_T1)}, {s(S_WSO)}")
        else:
            L_.append(f"s_add_u32 m0, {s(S_WM)}, {bb}")
            L_.append(f"s_add_u32 {s(S_T1)}, {s(S_WSO)}, {k*64*8192}")
        for p in range(4):
            L_.append(f"buffer_load_dwordx4 {v(WD(p))}, {s(SW,4)}, {s(S_T1)} offen offset:{1024*p}{wf} lds")
        if cfg.get("rot", 1):
            L_.append(f"s_lshl_b32 {s(S_T0)}, {s(S_J)}, 7")
            L_.append(f"s_add_u32 m0, {s(S_XM)}, {bb}")
            L_.append(f"s_add_u32 {s(S_T0)}, {s(S_T0)}, {s(S_XSO)}")
        else:
            L_.append(f"s_add_u32 m0, {s(S_XM)}, {bb}")
            L_.append(f"s_add_u32 {s(S_T0)}, {s(S_XSO)}, {k*128}")
        for p in range(4):
            L_.append(f"buffer_load_dwordx4 {v(XD(p))}, {s(SX,4)}, {s(S_T0)} offen offset:{1024*p}{xf} lds")
        L_.append(f"s_add_u32 m0, {s(S_XM)}, {bb + 4096}")
        L_.append("s_nop 0")
        for p in range(4, 6):
            L_.append(f"buffer_load_dwordx4 {v(XD(p))}, {s(SX,4)}, {s(S_T0)} offen offset:{1024*(p-4)}{xf} lds")
        vm.issue(f"S{k}", 10)
        return L_
    def touch():
        L_ = []
        if cfg.get("ntouch", 0):
            L_.append(f"buffer_load_dword {v(248)}, {v(TD(0))}, {s(SW,4)}, 0 offen{tf}")
            L_.append(f"buffer_load_dword {v(249)}, {v(TD(1))}, {s(SX,4)}, 0 offen{tf}")
            vm.issue("T", 2)
        return L_
    def quad(tag, srd, isK, goff, loff):
        L_ = [f"s_add_u32 m0, {s(S_M0B)}, {loff}", f"s_add_u32 {s(S_T0)}, {s(S_M0B)}, {goff}"]
        for p in range(4):
            vo = VKD + p if isK else VVD + (p & 1)
            L_.append(f"buffer_load_dwordx4 {v(vo)}, {s(srd,4)}, {s(S_T0)} offen offset:{1024*p} nt lds")
        vm.issue(tag, 4)
        return L_
    def G(t):
        return quad(f"G{t}", SK, True, (t + 1) * 16384, t * SLOT) + quad(f"G{t}", SV, False, t * 16384, t * SLOT + 16384)
    K0 = lambda: quad("K0", SK, True, 0, 3 * SLOT)
    g.tstamp(1)
    k0pos = cfg.get("k0pos", 1)
    tpos = cfg.get("tpos", 0)
    pro = (touch() if tpos == 0 else []) + sload(0) + (touch() if tpos == 1 else [])
    if k0pos == 0: pro += K0()
    pro += sload(1)
    for ins in pro: g("  " + ins)
    g.tstamp(2)
    cfg["_setup"](g)
    later = {(0, 0): lambda: sload(2)}
    for k in range(6): later[(k, 1)] = (lambda k=k: sload(k + 3))
    if k0pos == 1:
        later[(5, 1)] = lambda: sload(8) + K0()
    gp = cfg.get("gpos", [[6, 1], [8, 1], None])
    post = []
    for t in range(3):
        if gp[t] is None:
            post.append(t)
        else:
            key = tuple(gp[t]); prev = later.get(key)
            later[key] = (lambda t=t, prev=prev: (prev() if prev else []) + G(t))
    def reads(k, step):
        L_ = []
        hi = 1 if k % 3 == 2 else 0
        bb = 0 if hi else BB[k % 3]
        buf = step
        for mt in range(4):
            sl, hf = mt >> 1, mt & 1
            for half in range(2):
                L_.append(f"ds_read_b64_tr_b16 {v(AF(buf,mt)+2*half,2)}, {v(WA(hi,sl))} offset:{bb + step*8192 + half*1024 + hf*8}")
            if mt == 0:
                for qt in range(6):
                    L_.append(f"ds_read_b128 {v(BF(buf,qt),4)}, {v(XA(hi,step))} offset:{bb + qt*2048}")
        return L_
    def mfmas(k, step):
        L_ = []
        st = 2 * k + step
        for mt in range(4):
            for qt in range(6):
                c = "0" if st == 0 else v(ACC(mt, qt), 4)
                L_.append(f"{MF} {v(ACC(mt,qt),4)}, {v(AF(step,mt),4)}, {v(BF(step,qt),4)}, {c}")
        return L_
    zl = [f"v_accvgpr_write_b32 {a(i)}, 0" for i in list(range(192)) + list(range(AV, AV + 32))]
    def zeros(n):
        r = zl[:n]; del zl[:n]
        return r
    def mix(*lists):
        tot = sum(len(x) for x in lists)
        out = []; idx = [0] * len(lists)
        for _ in range(tot):
            best = min((i for i in range(len(lists)) if idx[i] < len(lists[i])), key=lambda i: (idx[i] + 0.5) / len(lists[i]))
            out.append(lists[best][idx[best]]); idx[best] += 1
        return out
    def grp(L_):
        out = []; cur = []
        for ins in L_:
            cur.append(ins)
            if ins.startswith("buffer_load"):
                out.append("\n  ".join(cur)); cur = []
        if cur: out.append("\n  ".join(cur))
        return out
    def place(mf, rd, dm, zs):
        n = len(mf)
        per = [[] for _ in range(n)]; cost = [0] * n
        rstep = cfg.get("rstep", 1)
        for i, x in enumerate(rd):
            j = min(n - 1, i * rstep); per[j].append(x); cost[j] += 1
        for i, x in enumerate(dm):
            j = min(n - 1, (i * n) // max(1, len(dm)) + cfg.get("dshift", 0)); per[j].append(x); cost[j] += 1 + x.count("\n")
        for x in zs:
            j = min(range(n), key=lambda q: (cost[q], -q)); per[j].append(x); cost[j] += 1
        for i in range(n):
            g("  " + mf[i])
            for x in per[i]: g("  " + x)
    g(f"  s_waitcnt vmcnt({vm.wait_for('S0')})")
    g.tstamp(3)
    g("  s_barrier")
    g.tstamp(4)
    g.stamp(3)
    for ins in reads(0, 0): g("  " + ins)
    for k in range(9):
        g("  s_waitcnt lgkmcnt(0)")
        lat = later.get((k, 0))
        place(mfmas(k, 0), reads(k, 1), grp(lat()) if lat else [], zeros(25 if k < 8 else len(zl)))
        g("  s_waitcnt lgkmcnt(0)")
        if k < 8:
            g(f"  s_waitcnt vmcnt({vm.wait_for('S%d' % (k+1))})")
        g.tstamp(5 + 2 * k)
        g("  s_barrier")
        g.tstamp(6 + 2 * k)
        lat = later.get((k, 1))
        place(mfmas(k, 1), reads(k + 1, 0) if k < 8 else [], grp(lat()) if lat else [], [])
    assert not zl
    g.tstamp(23)
    g("  s_nop 7")
    for qt in range(6):
        for mt in range(4):
            ac = ACC(mt, qt)
            for i in (0, 2):
                g(f"  v_pk_mul_f32 {v(ac+i,2)}, {v(ac+i,2)}, {s(S_SC,2)}")
    for qt in range(6):
        for sl in range(2):
            q = Q(qt, sl)
            for hf in range(2):
                ac = ACC(2 * sl + hf, qt)
                for i in range(2):
                    g(f"  v_cvt_pk_bf16_f32 {v(q+2*hf+i)}, {v(ac+2*i)}, {v(ac+2*i+1)}")
            g(f"  ds_write_b128 {v(EXW)}, {v(q,4)} offset:{(qt*2+sl)*1024}")
    g(f"  s_waitcnt vmcnt({vm.wait_for('K0')}) lgkmcnt(0)")
    g.tstamp(24)
    g("  s_barrier")
    g.tstamp(25)
    for qt in range(6):
        for sl in range(2):
            g(f"  ds_read_b128 {v(Q(qt,2+sl),4)}, {v(EXR)} offset:{(qt*2+sl)*1024}")
    for t in post:
        for ins in G(t): g("  " + ins)

def epilogue_variant(g, kh):
    keep = [4 * kh + i for i in range(4)]; send = [4 * (1 - kh) + i for i in range(4)]
    for qt in range(6):
        for di, dt in enumerate(send):
            g(f"  ds_write_b128 {v(VX+8)}, {a(O(qt,dt),4)} offset:{(qt*4+di)*1024}")
    g("  s_waitcnt lgkmcnt(0)")
    g("  s_barrier")
    for qt in range(6):
        for di in range(4):
            g(f"  ds_read_b128 {v((qt*4+di)*4,4)}, {v(VX+9)} offset:{(qt*4+di)*1024}")
    CH = VX + 10
    g(f"  v_mov_b32 {v(CH)}, 0\n  v_mov_b32 {v(CH+1)}, 0")
    for qt in range(6):
        go, gp = 96 + 4 * qt, 96 + 4 * qt + 2
        ob = 120 + (qt & 1) * 16
        for di, dt in enumerate(keep):
            for r in range(4):
                g(f"  v_accvgpr_read_b32 {v(ob+4*di+r)}, {a(O(qt,dt)+r)}")
        rem = 24 - (qt + 1) * 4
        g(f"  s_waitcnt lgkmcnt({min(rem,15)})")
        pb = qt * 16
        for i in range(0, 16, 2):
            g(f"  v_pk_mul_f32 {v(pb+i,2)}, {v(pb+i,2)}, {v(gp,2)}")
        for i in range(0, 16, 2):
            g(f"  v_pk_fma_f32 {v(pb+i,2)}, {v(ob+i,2)}, {v(go,2)}, {v(pb+i,2)}")
        for i in range(8):
            g(f"  v_cvt_pk_bf16_f32 {v(ob+i)}, {v(pb+2*i)}, {v(pb+2*i+1)}")
        for sidx in range(2):
            off = qt * 32 * 4 * 1024 + (2 * kh + sidx) * 1024
            g(f"  s_add_u32 {s(S_T0)}, {s(S_T2)}, {off}")
            g(f"  buffer_store_dwordx4 {v(ob+4*sidx,4)}, {v(VL16)}, {s(SO,4)}, {s(S_T0)} offen{g.cfg.get('ostore',' sc1')}")
        for i in range(0, 16, 2):
            g(f"  v_pk_add_f32 {v(CH,2)}, {v(CH,2)}, {v(pb+i,2)}")

def fused_outproj(g):
    cfg = g.cfg
    NPF = cfg.get("f_depth", 6)
    RING = 8
    T_QP, T_NT, T_OB, T_WB, T_RING, T_HW, T_HO, T_BITS, T_HID, T_ROT, T_SP, T_OWN = 76, 77, 78, 79, 80, 81, 82, 83, 84, 85, 86, 87
    T_B = 57
    VP = (20, 21); VZ, VD, VZA = 22, 23, 24
    def publish(lbl):
        g(f"""  s_cmp_eq_u32 s3, 0
  s_cbranch_scc0 {lbl}
  s_mov_b64 exec, 0x7ffffff
  global_atomic_add {v(VZA)}, {v(VD)}, {s(S_FLP,2)}
  s_mov_b64 exec, -1""")
        g.label(lbl)
    ACC = lambda mt, nt: 32 + (mt * 4 + nt) * 4
    NB = NPF + 1
    BF = lambda k, nt: 96 + ((k % NB) * 4 + nt) * 4
    AFB = 96 + NB * 16
    AF = lambda k, mt: AFB + ((k & 1) * 4 + mt) * 4
    assert AFB + 32 <= 248 and NPF + 1 <= RING
    ops = []; done = [0]
    def issue(tag, n=1): ops.extend([tag] * n)
    def wait_for(*tags):
        last = max(i for i, t in enumerate(ops) if t in tags)
        n = len([t for t in ops[last+1:] if not (t.startswith("P") and t != "P-2")])
        assert n <= 63
        done[0] = max(done[0], last + 1)
        return f"s_waitcnt vmcnt({n})"
    def is_done(tag):
        return max(i for i, t in enumerate(ops) if t == tag) < done[0]
    osc = cfg.get("f_osc", " sc1")
    issue("ST", 12)
    g(f"""  v_mbcnt_lo_u32_b32 v2, -1, 0
  v_mbcnt_hi_u32_b32 v2, -1, v2
  {"s_and_b32 " + s(T_B) + ", s2, 7" if cfg.get("fused") == 3 else "s_mov_b32 " + s(T_B) + ", " + s(S_B)}
  s_lshl_b32 s44, {s(T_B)}, 5
  s_add_u32 s45, s44, {s(S_TILE)}
  s_lshl_b32 s45, s45, 8
  v_mov_b32 {v(VZ)}, s45
  s_lshl_b32 s44, {s(S_B)}, 13
  v_lshlrev_b32 {v(VZA)}, 8, v2
  v_add_u32 {v(VZA)}, s44, {v(VZA)}
  s_lshl_b32 {s(T_OWN)}, 1, {s(S_H)}
  v_mov_b32 {v(VD)}, {s(T_OWN)}
  s_cmp_ge_u32 {s(S_TILE)}, 27
  s_cbranch_scc1 L_notile
  global_load_dword {v(VP[0])}, {v(VZ)}, {s(S_FLP,2)} sc1""")
    issue("P-2")
    g(f"""  s_mul_i32 {s(T_QP)}, {s(S_TILE)}, 57
  s_lshr_b32 {s(T_QP)}, {s(T_QP)}, 9
  s_mul_i32 s44, {s(T_QP)}, 9
  s_sub_u32 {s(T_NT)}, {s(S_TILE)}, s44
  v_lshrrev_b32 v3, 4, v2
  v_and_b32 v4, 15, v2
  v_lshlrev_b32 v10, 4, v2
  v_lshrrev_b32 v7, 3, v2
  v_and_b32 v8, 7, v2
  v_lshrrev_b32 v9, 1, v7
  v_and_b32 v9, 3, v9
  v_lshlrev_b32 v9, 1, v9
  v_xor_b32 v8, v8, v9
  v_lshlrev_b32 v8, 4, v8
  v_mul_u32_u24 v7, 1152, v7
  v_add_u32 v11, v7, v8
  v_add_u32 v12, 8192, v11
  v_add_u32 v13, 16384, v11
  v_add_u32 v14, 24576, v11
  s_mul_i32 s44, {s(T_B)}, 12
  s_lshl_b32 s45, {s(T_QP)}, 2
  s_add_u32 s44, s44, s45
  s_lshl_b32 s44, s44, 17
  s_lshl_b32 s45, s3, 15
  s_add_u32 {s(T_OB)}, s44, s45
  s_mul_i32 {s(T_WB)}, s3, {1024*1152}
  s_lshl_b32 {s(T_RING)}, s3, 15
  {"s_add_u32 " + s(T_ROT) + ", " + s(S_H) + ", 1" if cfg.get("f_rot", 0) else "s_mov_b32 " + s(T_ROT) + ", 0"}
  s_mov_b32 {s(T_SP)}, {cfg.get("f_spin", 300000)}
  s_lshl_b32 s44, {s(T_NT)}, 7
  s_add_u32 s8, {s(S_WOP)}, s44
  s_addc_u32 s9, {s(S_WOP+1)}, 0
  s_and_b32 s9, s9, 0xffff
  s_sub_u32 s10, {4096*1152}, s44
  s_mov_b32 s11, 0x20000
  s_mov_b32 s12, s32
  s_and_b32 s13, s33, 0xffff
  s_mov_b32 s14, {8*12*128*1024}
  s_mov_b32 s15, 0x20000
  s_mov_b32 s16, s88
  s_and_b32 s17, s89, 0xffff
  s_mov_b32 s18, {8*192*1152}
  s_mov_b32 s19, 0x20000""")
    def issueD(k):
        L_ = []
        i, ks = k >> 2, k & 3
        if ks == 0:
            L_ += [f"s_add_u32 s46, {s(T_ROT)}, {i}", "s_and_b32 s46, s46, 7", f"s_mul_i32 {s(T_HW)}, s46, {128*1152}",
                   f"s_add_u32 {s(T_HW)}, {s(T_HW)}, {s(T_WB)}"]
        L_.append(f"s_add_u32 m0, {s(T_RING)}, {(k % RING)*4096}")
        L_.append(f"s_add_u32 s44, {s(T_HW)}, {ks*32*1152}")
        for p in range(4):
            L_.append(f"buffer_load_dwordx4 {v(11+p)}, s[8:11], s44 offen offset:{1024*p} lds")
        issue(f"D{k}", 4)
        return L_
    def issueB(k):
        L_ = []
        i, ks = k >> 2, k & 3
        if ks == 0:
            blk = [f"s_add_u32 s46, {s(T_ROT)}, {i}", "s_and_b32 s46, s46, 7", f"s_lshl_b32 {s(T_HO)}, s46, 12",
                   f"s_lshl_b32 {s(T_HID)}, s3, 3", f"s_add_u32 {s(T_HID)}, {s(T_HID)}, s46",
                   f"s_add_u32 {s(T_HO)}, {s(T_HO)}, {s(T_OB)}"]
            if i >= 2:
                assert is_done(f"P{i-2}"), (k, i)
                blk += [f"v_readfirstlane_b32 s46, {v(VP[i & 1])}", "s_nop 0", f"s_or_b32 {s(T_BITS)}, {s(T_BITS)}, s46"]
            blk += [f"s_bitcmp1_b32 {s(T_BITS)}, {s(T_HID)}", f"s_cbranch_scc1 L_fok{i}",
                    f"L_fsp{i}:", f"s_sleep {cfg.get('f_sleep', 1)}", f"global_load_dword {v(VP[i & 1])}, {v(VZ)}, {s(S_FLP,2)} sc1", "s_waitcnt vmcnt(0)",
                    f"v_readfirstlane_b32 s46, {v(VP[i & 1])}", f"s_sub_u32 {s(T_SP)}, {s(T_SP)}, 1",
                    f"s_or_b32 {s(T_BITS)}, {s(T_BITS)}, s46", f"s_cmp_eq_u32 {s(T_SP)}, 0", f"s_cbranch_scc1 L_fok{i}",
                    f"s_bitcmp1_b32 {s(T_BITS)}, {s(T_HID)}", f"s_cbranch_scc0 L_fsp{i}", f"L_fok{i}:"]
            if i + 2 < 8:
                blk.append(f"global_load_dword {v(VP[i & 1])}, {v(VZ)}, {s(S_FLP,2)} sc1")
                issue(f"P{i}")
            L_.append("\n  ".join(blk))
        for nt in range(4):
            L_.append(f"s_add_u32 s45, {s(T_HO)}, {nt*131072 + ks*1024}\n  buffer_load_dwordx4 {v(BF(k,nt),4)}, v10, s[12:15], s45 offen{osc}")
        issue(f"B{k}", 4)
        return L_
    def areads(k):
        L_ = []
        for mt in range(4):
            for half in range(2):
                L_.append(f"ds_read_b64_tr_b16 {v(AF(k,mt)+2*half,2)}, {v(16+mt)} offset:{(k%RING)*4096 + half*2048}")
        return L_
    for k in range(NPF):
        for ins in issueD(k): g("  " + ins)
    g("""  v_lshrrev_b32 v7, 2, v4
  v_and_b32 v8, 3, v4
  v_lshl_add_u32 v9, v3, 2, v7
  v_lshrrev_b32 v5, 1, v9
  v_and_b32 v5, 3, v5
  v_lshlrev_b32 v5, 1, v5
  v_lshrrev_b32 v6, 1, v8
  v_xor_b32 v5, v5, v6
  v_lshlrev_b32 v5, 4, v5
  v_and_b32 v6, 1, v8
  v_lshl_add_u32 v5, v6, 3, v5
  v_lshl_add_u32 v5, v9, 7, v5""")
    g(f"""  v_add_u32 v16, {s(T_RING)}, v5
  v_xor_b32 v17, 32, v16
  v_xor_b32 v18, 64, v16
  v_xor_b32 v19, 96, v16""")
    g("  " + wait_for("ST"))
    g("  s_barrier")
    publish("L_nopub")
    g("  " + wait_for("P-2"))
    if cfg.get("fdbg"): g.stamp(5)
    g(f"  v_readfirstlane_b32 {s(T_BITS)}, {v(VP[0])}")
    if cfg.get("fused") != 3: g(f"  s_nop 0\n  s_or_b32 {s(T_BITS)}, {s(T_BITS)}, {s(T_OWN)}")
    for k in range(NPF):
        for ins in issueB(k): g("  " + ins)
    g("  " + wait_for("D0", "B0"))
    for ins in areads(0): g("  " + ins)
    NK = 32
    for k in range(NK):
        nxt = (issueD(k + NPF) + issueB(k + NPF)) if k + NPF < NK else []
        mf = []
        for mt in range(4):
            for nt in range(4):
                c = "0" if k == 0 else v(ACC(mt, nt), 4)
                mf.append(f"{MF} {v(ACC(mt,nt),4)}, {v(AF(k,mt),4)}, {v(BF(k,nt),4)}, {c}")
        g("  s_waitcnt lgkmcnt(0)")
        grp = []; cur = []
        for ins in nxt:
            cur.append(ins)
            if "buffer_load" in ins or "global_load" in ins:
                grp.append("\n  ".join(cur)); cur = []
        assert not cur
        spread(g, mf[:8], grp)
        if k + 1 < NK:
            g("  " + wait_for(f"D{k+1}", f"B{k+1}"))
            spread(g, mf[8:], areads(k + 1))
        else:
            spread(g, mf[8:], [])
    g.stamp(3)
    if cfg.get("fdbg"): g(f"  s_sub_u32 s72, {cfg.get('f_spin', 300000)}, {s(T_SP)}\n  s_add_u32 s72, s72, 1\n  s_mov_b32 s73, 0")
    PITCH = 272
    g("  s_nop 7\n  s_barrier")
    g(f"""  v_mul_u32_u24 v7, {PITCH}, v4
  v_lshl_add_u32 v7, v3, 4, v7
  s_mul_i32 s45, s3, {64*PITCH}
  v_add_u32 v7, s45, v7""")
    for mt in range(4):
        for nt in range(4):
            g(f"  ds_write_b128 v7, {v(ACC(mt,nt),4)} offset:{nt*16*PITCH + mt*64}")
    g(f"""  s_lshl_b32 s45, s3, 6
  v_add_u32 v0, s45, v2
  s_waitcnt lgkmcnt(0)
  s_barrier
  v_lshrrev_b32 v7, 3, v0
  v_and_b32 v8, 7, v0
  v_mul_u32_u24 v9, {PITCH}, v7
  v_lshl_add_u32 v9, v8, 5, v9""")
    for i in range(2):
        for w in range(4):
            for hq in range(2):
                g(f"  ds_read_b128 {v(96 + ((i*4+w)*2+hq)*4, 4)}, v9 offset:{i*32*PITCH + w*64*PITCH + hq*16}")
    g(f"""  s_mul_i32 s45, {s(T_B)}, 192
  s_lshl_b32 s46, {s(T_QP)}, 6
  s_add_u32 s45, s45, s46
  s_mul_i32 s45, s45, 1152
  s_lshl_b32 s46, {s(T_NT)}, 7
  s_add_u32 s45, s45, s46
  v_mul_u32_u24 v7, 1152, v7
  v_lshl_add_u32 v7, v8, 4, v7""")
    for i in range(2):
        g(f"  s_waitcnt lgkmcnt({8 if i == 0 else 0})")
        b0 = 96 + i * 32
        for w in range(1, 4):
            for e in range(0, 8, 2):
                g(f"  v_pk_add_f32 {v(b0+e,2)}, {v(b0+e,2)}, {v(b0+w*8+e,2)}")
        for e in range(4):
            g(f"  v_cvt_pk_bf16_f32 {v(b0+e)}, {v(b0+2*e)}, {v(b0+2*e+1)}")
        g(f"  s_add_u32 s46, s45, {i*32*1152}")
        g(f"  buffer_store_dwordx4 {v(b0,4)}, v7, s[16:19], s46 offen")
    g("  s_branch L_fin")
    g.label("L_notile")
    g("  s_waitcnt vmcnt(0)\n  s_barrier")
    publish("L_pub2")

def gen_k1(g):
    cfg = g.cfg
    g(f".globl {K1}\n.p2align 8\n.type {K1},@function\n{K1}:")
    g("  s_cmp_ge_u32 s2, 256\n  s_cbranch_scc1 L_k1_end")
    g(f"  s_load_dwordx4 s[4:7], s[0:1], 0\n  s_load_dwordx4 s[28:31], s[0:1], 16\n  s_load_dwordx2 s[32:33], s[0:1], 56\n  s_load_dwordx2 {s(S_WOP,2)}, s[0:1], 32")
    fused = cfg.get("fused", 0)
    if fused: g("  s_load_dwordx4 s[88:91], s[0:1], 40")
    if cfg.get("stamps"): g(f"  s_memrealtime {s(S_STAMP,2)}")
    if cfg.get("qtrace"): g("  v_mov_b32 v250, 0\n  v_mov_b32 v251, 0")
    g(f"  v_lshrrev_b32 v1, 6, v0\n  s_mov_b32 {s(S_PASS)}, 0\n  v_readfirstlane_b32 s3, v1")
    mm = cfg.get("map", 3)
    g("  s_and_b32 s44, s2, 7\n  s_lshr_b32 s45, s2, 3")
    if mm == 2:
        g(f"  s_mov_b32 {s(S_B)}, s44\n  s_mov_b32 {s(S_H)}, s45")
    elif mm == 3:
        g(f"""  s_and_b32 s46, s44, 1
  s_lshl_b32 s46, s46, 2
  s_and_b32 s47, s45, 3
  s_add_u32 {s(S_B)}, s46, s47
  s_lshr_b32 s46, s44, 1
  s_lshl_b32 s46, s46, 3
  s_lshr_b32 s47, s45, 2
  s_add_u32 {s(S_H)}, s46, s47""")
    elif mm == 0:
        g(f"  s_lshr_b32 {s(S_B)}, s2, 5\n  s_and_b32 {s(S_H)}, s2, 31")
    g(f"""  s_and_b32 {s(S_RG)}, s3, 1
  s_lshr_b32 {s(S_KH)}, s3, 1
  s_lshl_b32 s44, {s(S_B)}, 5
  s_add_u32 s44, s44, {s(S_H)}
  s_lshl_b32 s44, s44, 19
  s_mul_i32 s45, {s(S_B)}, 221184
  s_lshl_b32 s46, {s(S_H)}, 8
  s_waitcnt lgkmcnt(0)
  s_add_u32 s16, s4, s45
  s_addc_u32 s17, s5, 0
  s_and_b32 s17, s17, 0xffff
  s_mov_b32 s18, 221184
  s_mov_b32 s19, 0x20000
  s_add_u32 s20, s30, s46
  s_addc_u32 s21, s31, 0
  s_and_b32 s21, s21, 0xffff
  s_sub_u32 s22, {576*8192}, s46
  s_mov_b32 s23, 0x20000
  s_add_u32 s8, s6, s44
  s_addc_u32 s9, s7, 0
  s_and_b32 s9, s9, 0xffff
  s_mov_b32 s10, 0x80000
  s_mov_b32 s11, 0x20000
  s_add_u32 s12, s28, s44
  s_addc_u32 s13, s29, 0
  s_and_b32 s13, s13, 0xffff
  s_mov_b32 s14, 0x80000
  s_mov_b32 s15, 0x20000""")
    if fused:
        g(f"""  s_cmp_eq_u32 s3, 0
  s_cselect_b32 {s(S_TK)}, {cfg.get("tkit", 7)}, 99
  s_add_u32 {s(S_FLP)}, s32, {hex(FLOFF)}
  s_addc_u32 {s(S_FLP+1)}, s33, 0
  s_or_b32 s44, s3, {s(S_H)}
  s_cmp_eq_u32 s44, 0
  s_cbranch_scc0 L_nozero
  v_mbcnt_lo_u32_b32 v2, -1, 0
  v_lshlrev_b32 v2, 8, v2
  s_lshl_b32 s44, {s(S_B)}, 13
  v_add_u32 v2, s44, v2
  v_mov_b32 v3, 0
  s_mov_b32 exec_hi, 0
  global_store_dword v2, v3, {s(S_FLP,2)} sc1
  s_mov_b64 exec, -1""")
        g.label("L_nozero")
    g.label("L_restart")
    g("""  v_mbcnt_lo_u32_b32 v2, -1, 0
  v_mbcnt_hi_u32_b32 v2, -1, v2
  v_lshrrev_b32 v3, 4, v2
  v_and_b32 v4, 15, v2""")
    g(f"""  v_lshrrev_b32 v5, 3, v2
  v_mul_u32_u24 v5, 1152, v5
  v_and_b32 v6, 7, v2
  v_xor_b32 v6, v6, v3
  v_lshl_add_u32 {v(XD(0))}, v6, 4, v5
  v_xor_b32 v6, 4, v6
  v_lshl_add_u32 v7, v6, 4, v5""")
    for p in range(1, 6):
        src_ = "v7" if p & 1 else v(XD(0))
        g(f"  v_add_u32 {v(XD(p))}, {p*9216 - (p&3)*1024}, {src_}")
    g(f"""  v_lshlrev_b32 v5, 2, v3
  v_xor_b32 v5, v5, v4
  v_lshlrev_b32 v5, 4, v5
  v_lshl_add_u32 {v(WD(0))}, v3, 13, v5""")
    for p in range(1, 4):
        g(f"  v_add_u32 {v(WD(p))}, {p*(4*8192-1024)}, {v(WD(0))}")
    g(f"""  s_mul_i32 {s(S_XM)}, s3, 6144
  s_mul_i32 {s(S_XSO)}, s3, {48*1152}
  s_lshl_b32 {s(S_WM)}, s3, 12
  s_add_u32 {s(S_WM)}, {s(S_WM)}, 24576
  s_lshl_b32 {s(S_WSO)}, s3, 17
  s_lshl_b32 {s(S_M0B)}, s3, 12""")
    ra, rb = cfg.get("rotab", (2, 1))
    g(f"""  s_and_b32 s44, {s(S_B)}, 3
  s_mul_i32 s44, s44, {ra}
  s_and_b32 s45, {s(S_H)}, 7
  s_mul_i32 s45, s45, {rb}
  s_add_u32 s44, s44, s45
  s_sub_u32 s45, s44, 9
  s_cmp_ge_u32 s44, 9
  s_cselect_b32 {s(S_J)}, s45, s44""")
    g(f"""  s_and_b32 s44, {s(S_B)}, 3
  s_lshl_b32 s44, s44, 2
  s_add_u32 s44, s44, s3
  s_add_u32 s44, s44, 2
  s_lshl_b32 s44, s44, 18
  v_lshrrev_b32 v5, 1, v2
  v_lshlrev_b32 v5, 13, v5
  v_and_b32 v6, 1, v2
  v_lshl_add_u32 v5, v6, 7, v5
  v_add_u32 {v(TD(0))}, s44, v5
  s_and_b32 s44, {s(S_H)}, 7
  s_lshl_b32 s44, s44, 2
  s_add_u32 s44, s44, s3
  s_mul_i32 s44, s44, {6*1152}
  s_add_u32 s44, s44, 128
  v_lshrrev_b32 v5, 3, v2
  v_mul_u32_u24 v5, 1152, v5
  v_and_b32 v6, 7, v2
  v_lshl_add_u32 v5, v6, 7, v5
  v_add_u32 {v(TD(1))}, s44, v5""")
    for p in range(4):
        g(f"""  v_add_u32 v7, {4*p}, v3
  v_xor_b32 v7, v7, v4
  v_lshlrev_b32 v7, 4, v7
  v_lshl_add_u32 {v(VKD+p)}, v3, 8, v7""")
    for p in range(2):
        g(f"""  v_add_u32 v7, {4*p}, v3
  v_lshlrev_b32 v7, 1, v7
  v_xor_b32 v7, v7, v4
  v_lshlrev_b32 v7, 4, v7
  v_lshl_add_u32 {v(VVD+p)}, v3, 8, v7""")

    def setup(g):
        g("  v_lshrrev_b32 v9, 2, v4\n  v_and_b32 v10, 3, v4")
        g(f"""  v_lshlrev_b32 v11, 2, v9
  v_xor_b32 v11, v11, v10
  v_lshlrev_b32 v11, 4, v11
  v_lshl_add_u32 v12, v3, 3, v9
  v_lshl_add_u32 v11, v12, 8, v11
  s_lshl_b32 s45, {s(S_KH)}, 7
  v_xor_b32 v11, s45, v11""")
        for sl in range(2):
            g(f"  v_xor_b32 v12, {sl*64}, v11\n  v_add_u32 {v(WA(0,sl))}, 24576, v12\n  v_add_u32 {v(WA(1,sl))}, {24576 + BB[2]}, v12")
        g(f"""  v_lshrrev_b32 v11, 1, v4
  v_xor_b32 v11, v11, v3
  v_lshlrev_b32 v11, 4, v11
  v_lshl_add_u32 v11, v4, 7, v11
  s_mul_i32 s44, {s(S_RG)}, {96*128}
  v_add_u32 v11, s44, v11
  v_mov_b32 {v(XA(0,0))}, v11
  v_xor_b32 {v(XA(0,1))}, 64, v11
  v_add_u32 {v(XA(1,0))}, {BB[2]}, {v(XA(0,0))}
  v_add_u32 {v(XA(1,1))}, {BB[2]}, {v(XA(0,1))}""")
        g(f"""  s_lshl_b32 s44, {s(S_KH)}, 13
  v_xor_b32 v8, v3, v4
  v_lshlrev_b32 v8, 4, v8
  v_lshl_add_u32 v8, v4, 8, v8
  v_xor_b32 v8, s45, v8
  v_add_u32 v8, s44, v8""")
        for ks in range(4):
            g(f"  v_xor_b32 {v(VKA+ks)}, {ks*64}, v8")
            g(f"  v_add_u32 {v(VKA+4+ks)}, 0x10000, {v(VKA+ks)}")
        g(f"""  v_and_b32 v11, 1, v3
  v_lshl_add_u32 v11, v11, 2, v9
  v_lshlrev_b32 v11, 1, v11
  v_lshrrev_b32 v12, 1, v10
  v_xor_b32 v11, v11, v12
  v_lshlrev_b32 v11, 4, v11
  v_and_b32 v12, 1, v10
  v_lshl_add_u32 v11, v12, 3, v11
  v_lshl_add_u32 v12, v3, 2, v9
  v_lshl_add_u32 v11, v12, 8, v11
  v_add_u32 v11, s44, v11
  v_add_u32 v11, 16384, v11""")
        for dt in range(8):
            g(f"  v_xor_b32 {v(VVA+dt)}, {dt*32}, v11")
            g(f"  v_add_u32 {v(VVA+8+dt)}, 0x10000, {v(VVA+dt)}")
        g(f"""  v_cmp_eq_u32 vcc, 0, v10
  v_mov_b32 v12, 0x3f803f80
  v_cndmask_b32 {v(VONE)}, 0, v12, vcc
  v_mov_b32 {v(VONE+1)}, {v(VONE)}
  v_mov_b32 {v(VONE+2)}, {v(VONE)}
  v_mov_b32 {v(VONE+3)}, {v(VONE)}""")
        sc = f2u(math.log2(math.e) / math.sqrt(128.0))
        g(f"""  v_lshlrev_b32 {v(VL16)}, 4, v2
  s_mul_i32 s44, s3, 12288
  s_add_u32 s44, s44, {WB}
  v_add_u32 {v(EXW)}, s44, {v(VL16)}
  s_xor_b32 s45, s3, 2
  s_mul_i32 s44, s45, 12288
  s_add_u32 s44, s44, {WB}
  v_add_u32 {v(EXR)}, s44, {v(VL16)}
  s_mov_b32 {s(S_SC)}, {hex(sc)}
  s_mov_b32 {s(S_SC+1)}, {hex(sc)}
  s_add_u32 {s(S_KOFF)}, {s(S_M0B)}, {4*16384}
  s_add_u32 {s(S_VOFF)}, {s(S_M0B)}, {3*16384}""")
    cfg["_setup"] = setup
    qproj(g)
    if fused:
        g(f"""  s_or_b32 s44, s3, {s(S_H)}
  s_or_b32 s44, s44, {s(S_PASS)}
  s_cmp_eq_u32 s44, 0
  s_cbranch_scc0 L_nordy
  s_lshl_b32 s44, {s(S_B)}, 4
  s_add_u32 s44, s44, 132
  v_mov_b32 {v(TKO)}, s44
  v_mov_b32 {v(TKD)}, 1
  s_mov_b64 exec, 1
  global_store_dword {v(TKO)}, {v(TKD)}, s[90:91] sc1
  s_mov_b64 exec, -1""")
        g.label("L_nordy")
    g.stamp(1)
    g.cstamp(5)
    g(f"  s_cmp_eq_u32 {s(S_PASS)}, 0\n  s_cbranch_scc0 L_maxpass")
    for ks in range(4):
        for kt in range(2):
            g("  " + kread(kt, ks, 3))
    for i in range(24): g(f"  v_mov_b32 {v(VL+i)}, 0")
    for i in range(8): g(f"  v_mov_b32 {v(P(1)+i)}, 0")
    g("  s_waitcnt lgkmcnt(0)")
    for ks in range(4):
        for qt in range(6):
            c = "0" if ks == 0 else v(NM(qt), 4)
            g(f"  {MF} {v(NM(qt),4)}, {a(KF(0,ks),4)}, {v(Q(qt,ks),4)}, {c}")
    g("  s_nop 7")
    def rowmax_finish():
        for qt in range(6): g(f"  v_mov_b32 {v(NM(qt)+1)}, {v(NM(qt))}")
        g("  s_nop 1")
        for qt in range(6): g(f"  v_permlane32_swap_b32 {v(NM(qt))}, {v(NM(qt)+1)}")
        g("  s_nop 1")
        for qt in range(6): g(f"  v_max_f32 {v(NM(qt))}, {v(NM(qt))}, {v(NM(qt)+1)}")
        for qt in range(6): g(f"  v_mov_b32 {v(NM(qt)+1)}, {v(NM(qt))}")
        g("  s_nop 1")
        for qt in range(6): g(f"  v_permlane16_swap_b32 {v(NM(qt))}, {v(NM(qt)+1)}")
        g("  s_nop 1")
        for qt in range(6): g(f"  v_max_f32 {v(NM(qt))}, {v(NM(qt))}, {v(NM(qt)+1)}")
        for qt in range(6):
            g(f"  v_sub_f32 {v(NM(qt))}, 0, {v(NM(qt))}")
        for qt in range(6):
            for r in range(1, 4): g(f"  v_mov_b32 {v(NM(qt)+r)}, {v(NM(qt))}")
    for qt in range(6):
        g(f"  v_max3_f32 {v(NM(qt))}, {v(NM(qt))}, {v(NM(qt)+1)}, {v(NM(qt)+2)}")
    for qt in range(6):
        g(f"  v_max_f32 {v(NM(qt))}, {v(NM(qt))}, {v(NM(qt)+3)}")
    rowmax_finish()
    g.label("L_join")
    g.tstamp(26)
    g("  s_nop 1")
    for m in qk_mfmas(0, 0): g("  " + m)
    g(f"  s_mov_b32 {s(S_CNT)}, 0")
    g.label("L_loop")
    if fused:
        tk = f"global_atomic_add {v(TKV)}, {v(TKO)}, {v(TKD)}, {s(S_FLP,2)} sc0" if fused >= 2 else "s_nop 0"
        cidx = "s2, 7" if fused == 3 else f"{s(S_B)}, 7"
        g(f"""  s_sub_u32 s44, {s(S_TK)}, 4
  s_cmp_eq_u32 {s(S_CNT)}, s44
  s_cbranch_scc0 L_nordp
  v_lshrrev_b32 {v(TKO)}, 0, {v(VL16)}
  s_mov_b64 exec, 0xff
  global_load_dword {v(RDV)}, {v(TKO)}, s[90:91] offset:132 sc1
  s_mov_b64 exec, -1
L_nordp:
  s_cmp_eq_u32 {s(S_CNT)}, {s(S_TK)}
  s_cbranch_scc0 L_notk
  s_mov_b32 s45, {cfg.get("f_spin", 300000)}
  v_mov_b32 {v(TKO)}, {v(VL16)}
L_rdchk:
  s_mov_b64 exec, 0xff
  v_cmp_eq_u32 vcc, 0, {v(RDV)}
  s_cbranch_vccz L_rdok
  s_sleep 8
  global_load_dword {v(RDV)}, {v(TKO)}, s[90:91] offset:132 sc1
  s_waitcnt vmcnt(0)
  s_sub_u32 s45, s45, 1
  s_cmp_eq_u32 s45, 0
  s_cbranch_scc0 L_rdchk
L_rdok:
  s_and_b32 s44, {cidx}
  s_lshl_b32 s44, s44, 13
  s_add_u32 s44, s44, {31*256}
  s_mov_b64 exec, 1
  v_mov_b32 {v(TKO)}, s44
  v_mov_b32 {v(TKD)}, 1
  s_nop 0
  {tk}
  s_mov_b64 exec, -1""")
        g.label("L_notk")
    for t in range(4):
        g(f"  s_waitcnt vmcnt({cfg.get('vm',16)})")
        g("  s_barrier")
        if cfg.get("trace"):
            g("  s_memrealtime s[76:77]\n  s_memtime s[80:81]")
            g(f"  s_lshl_b32 s78, {s(S_CNT)}, 2\n  s_add_u32 s78, s78, {t}")
        for j in range(3):
            stage(g, t, j)
    g(f"  s_add_u32 {s(S_CNT)}, {s(S_CNT)}, 1\n  s_cmp_lt_u32 {s(S_CNT)}, 8\n  s_cbranch_scc1 L_loop")
    for m in pv_mfmas(2, 1): g("  " + m)
    g.stamp(2)
    g.cstamp(6)
    g(f"""  v_lshrrev_b32 {v(VX)}, 2, {v(VL16)}
  s_mul_i32 s44, s3, 3072
  s_add_u32 s44, s44, {STATS}
  v_add_u32 {v(VX+1)}, s44, {v(VX)}
  s_xor_b32 s45, s3, 2
  s_mul_i32 s44, s45, 3072
  s_add_u32 s44, s44, {STATS}
  v_add_u32 {v(VX+2)}, s44, {v(VX)}
  s_nop 4""")
    for qt in range(6):
        g(f"  ds_write_b32 {v(VX+1)}, {v(NM(qt))} offset:{qt*512}")
        g(f"  ds_write_b32 {v(VX+1)}, {v(L(qt))} offset:{qt*512+256}")
    if fused >= 2:
        g(f"""  s_waitcnt vmcnt(0)
  s_cmp_eq_u32 {s(S_TK)}, 99
  s_cbranch_scc1 L_notkw
  v_readfirstlane_b32 s44, {v(TKV)}
  v_mov_b32 {v(TKO)}, {FLAGS + 16}
  s_nop 1
  v_mov_b32 {v(TKD)}, s44
  ds_write_b32 {v(TKO)}, {v(TKD)}""")
        g.label("L_notkw")
    g("  s_waitcnt vmcnt(0) lgkmcnt(0)\n  s_barrier")
    if fused >= 2:
        g(f"  v_mov_b32 {v(TKO)}, {FLAGS + 16}\n  ds_read_b32 {v(TKV)}, {v(TKO)}")
    for qt in range(6):
        g(f"  ds_read_b32 {v(S(0)+2*qt)}, {v(VX+2)} offset:{qt*512}")
        g(f"  ds_read_b32 {v(S(0)+2*qt+1)}, {v(VX+2)} offset:{qt*512+256}")
    if cfg.get("wopf", 1):
        g(f"""  s_mov_b32 {s(SWO)}, {s(S_WOP)}
  s_and_b32 {s(SWO+1)}, {s(S_WOP+1)}, 0xffff
  s_mov_b32 {s(SWO+2)}, {4096*1152}
  s_mov_b32 {s(SWO+3)}, 0x20000
  s_mul_i32 s44, s2, 18432
  s_mul_i32 s45, s3, 4608
  s_add_u32 s44, s44, s45""")
        for i in range(5):
            g(f"  buffer_load_dwordx4 {v(VX+24,4)}, {v(VL16)}, {s(SWO,4)}, s44 offen offset:{min(1024*i, 3584)}")
    g(f"""  s_mul_i32 s44, s3, 24576
  v_add_u32 {v(VX+8)}, s44, {v(VL16)}
  s_xor_b32 s45, s3, 2
  s_mul_i32 s44, s45, 24576
  v_add_u32 {v(VX+9)}, s44, {v(VL16)}
  s_mul_i32 s44, {s(S_RG)}, 6
  s_mul_i32 s45, {s(S_B)}, 12
  s_add_u32 s44, s44, s45
  s_lshl_b32 s44, s44, 5
  s_add_u32 s44, s44, {s(S_H)}
  s_lshl_b32 {s(S_T2)}, s44, 12
  s_mov_b32 s24, s32
  s_and_b32 s25, s33, 0xffff
  s_mov_b32 s26, {8*12*128*1024}
  s_mov_b32 s27, 0x20000
  s_waitcnt lgkmcnt(0)""")
    if fused >= 2:
        g(f"""  s_cmp_eq_u32 {s(S_PASS)}, 0
  s_cbranch_scc0 L_havetk
  v_readfirstlane_b32 {s(S_TILE)}, {v(TKV)}""")
        g.label("L_havetk")
    elif fused:
        g(f"  s_mov_b32 {s(S_TILE)}, {s(S_H)}")
    LS = VX + 6
    g(f"  v_add_f32 {v(LS)}, {v(L(0))}, {v(L(1))}")
    for qt in range(2, 6): g(f"  v_add_f32 {v(LS)}, {v(LS)}, {v(L(qt))}")
    for qt in range(6):
        nmo, nmp, lp = NM(qt), S(0) + 2 * qt, S(0) + 2 * qt + 1
        t, fo, fp = VX + 3, VX + 4, VX + 5
        go, gp = S(0) + 0, 0
        g(f"""  v_min_f32 {v(t)}, {v(nmo)}, {v(nmp)}
  v_sub_f32 {v(fo)}, {v(t)}, {v(nmo)}
  v_sub_f32 {v(fp)}, {v(t)}, {v(nmp)}
  v_exp_f32 {v(fo)}, {v(fo)}
  v_exp_f32 {v(fp)}, {v(fp)}
  s_nop 0
  v_mul_f32 {v(t)}, {v(L(qt))}, {v(fo)}
  v_fma_f32 {v(t)}, {v(lp)}, {v(fp)}, {v(t)}
  v_rcp_f32 {v(t)}, {v(t)}
  s_nop 0
  v_mul_f32 {v(NM(qt))}, {v(fo)}, {v(t)}
  v_mul_f32 {v(NM(qt)+2)}, {v(fp)}, {v(t)}""")
    for qt in range(6):
        go, gp = 96 + 4 * qt, 96 + 4 * qt + 2
        g(f"""  v_mov_b32 {v(go)}, {v(NM(qt))}
  v_mov_b32 {v(go+1)}, {v(NM(qt))}
  v_mov_b32 {v(gp)}, {v(NM(qt)+2)}
  v_mov_b32 {v(gp+1)}, {v(NM(qt)+2)}""")
    g(f"  s_cmp_eq_u32 {s(S_KH)}, 0\n  s_cbranch_scc0 L_ep1")
    epilogue_variant(g, 0)
    g("  s_branch L_ep_done")
    g.label("L_ep1")
    epilogue_variant(g, 1)
    g.label("L_ep_done")
    CH = VX + 10
    g(f"""  v_add_f32 {v(CH)}, {v(CH)}, {v(CH+1)}
  v_sub_f32 {v(CH)}, {v(CH)}, {v(CH)}
  v_cmp_u_f32 vcc, {v(CH)}, {v(CH)}
  s_mov_b64 s[46:47], vcc
  v_mov_b32 {v(CH+1)}, {hex(f2u(LTHR))}
  v_cmp_nle_f32 vcc, {v(LS)}, {v(CH+1)}
  s_or_b64 s[46:47], s[46:47], vcc
  s_cmp_lg_u64 s[46:47], 0
  s_cselect_b32 s44, 1, 0
  s_lshl_b32 s45, s3, 2
  s_add_u32 s45, s45, {FLAGS}
  v_mov_b32 {v(CH)}, s44
  v_mov_b32 {v(CH+1)}, s45
  ds_write_b32 {v(CH+1)}, {v(CH)}
  s_waitcnt lgkmcnt(0)
  s_barrier
  v_mov_b32 {v(CH+1)}, {FLAGS}
  ds_read_b128 {v(VX+12,4)}, {v(CH+1)}
  s_waitcnt lgkmcnt(0)
  v_or3_b32 {v(CH)}, {v(VX+12)}, {v(VX+13)}, {v(VX+14)}
  v_or_b32 {v(CH)}, {v(CH)}, {v(VX+15)}
  s_nop 0
  v_readfirstlane_b32 s44, {v(CH)}
  s_xor_b32 s45, {s(S_PASS)}, 1
  s_and_b32 s44, s44, s45
  s_cmp_lg_u32 s44, 0
  s_cbranch_scc1 L_fallback""")
    if fused:
        g.stamp(4)
        fused_outproj(g)
        g.label("L_fin")
        if cfg.get("stamps"):
            g(f"  v_mbcnt_lo_u32_b32 {v(VL16)}, -1, 0\n  v_mbcnt_hi_u32_b32 {v(VL16)}, -1, {v(VL16)}\n  v_lshlrev_b32 {v(VL16)}, 4, {v(VL16)}")
    g("  s_waitcnt vmcnt(0)")
    if cfg.get("dbgout"):
        g.stamp(7)
        g(f"""  s_add_u32 s30, s32, {hex(STAMP_OFF)}
  s_addc_u32 s31, s33, 0
  s_and_b32 s44, s2, 63
  s_cmp_eq_u32 s44, {cfg.get("dbgout")-1}
  s_cbranch_scc0 L_k1_end
  s_cmp_eq_u32 s3, 0
  s_cbranch_scc0 L_k1_end
  s_lshr_b32 s44, s2, 6
  s_lshl_b32 s44, s44, 4
  s_sub_u32 s62, s62, s60
  s_sub_u32 s64, s64, s60
  s_sub_u32 s74, s74, s60
  s_sub_u32 s72, s72, s70
  v_mov_b32 v20, s62
  v_mov_b32 v21, s64
  v_mov_b32 v22, s74
  v_mov_b32 v23, s72
  v_mov_b32 v24, s44
  v_cmp_eq_u32 vcc, 0, {v(VL16)}
  s_and_saveexec_b64 s[46:47], vcc
  s_waitcnt lgkmcnt(0)
  global_store_dwordx4 v24, v[20:23], s[30:31]
  v_mov_b32 v20, s60
  v_lshrrev_b32 v24, 2, v24
  global_store_dword v24, v20, s[30:31] offset:64
  s_waitcnt vmcnt(0)""")
    elif cfg.get("stamps"):
        g.stamp(7)
        g(f"""  s_add_u32 s30, s32, {hex(STAMP_OFF)}
  s_addc_u32 s31, s33, 0
  s_lshl_b32 s44, s2, 6
  s_add_u32 s30, s30, s44
  s_addc_u32 s31, s31, 0
  v_mov_b32 v24, 0
  s_cmp_eq_u32 s3, {cfg.get("stampwave", 0)}
  s_cbranch_scc0 L_k1_end
  v_cmp_eq_u32 vcc, 0, {v(VL16)}
  s_and_saveexec_b64 s[46:47], vcc
  s_cbranch_execz L_k1_end""")
        for i in (0, 1, 2, 3, 4, 5, 6, 7):
            g(f"  v_mov_b32 v20, {s(S_STAMP+2*i)}\n  v_mov_b32 v21, {s(S_STAMP+2*i+1)}\n  global_store_dwordx2 v24, v[20:21], s[30:31] offset:{8*i}\n  s_nop 1")
        g("  s_waitcnt vmcnt(0)")
        if cfg.get("trace") or cfg.get("qtrace"):
            g(f"""  s_mov_b64 exec, -1
  s_add_u32 s30, s32, {hex(STAMP_OFF - 0xc000)}
  s_addc_u32 s31, s33, 0
  s_lshl_b32 s44, s2, 7
  s_add_u32 s30, s30, s44
  s_addc_u32 s31, s31, 0
  v_lshrrev_b32 v24, 2, {v(VL16)}
  v_cmp_gt_u32 vcc, 128, v24
  s_and_saveexec_b64 s[46:47], vcc
  global_store_dword v24, v250, s[30:31]
  s_sub_u32 s30, s30, 0x8000
  s_subb_u32 s31, s31, 0
  global_store_dword v24, v251, s[30:31]
  s_waitcnt vmcnt(0)""")
    g.label("L_k1_end")
    g("  s_endpgm")
    g.label("L_fallback")
    g(f"""  s_waitcnt vmcnt(0) lgkmcnt(0)
  s_mov_b32 {s(S_PASS)}, 1
  s_mov_b32 {s(S_TK)}, 99
  s_barrier
  s_branch L_restart""")
    g.label("L_maxpass")
    for i in range(24): g(f"  v_mov_b32 {v(VL+i)}, 0")
    for i in range(8): g(f"  v_mov_b32 {v(P(1)+i)}, 0")
    for qt in range(6): g(f"  v_mov_b32 {v(NM(qt))}, 0xff800000")
    g(f"""  s_mov_b32 {s(S_CNT)}, 0
  s_mov_b32 {s(S_T1)}, {s(S_M0B)}
  s_waitcnt vmcnt(0) lgkmcnt(0)
  s_barrier""")
    g.label("L_mp_loop")
    g(f"  s_add_u32 m0, {s(S_M0B)}, {3*SLOT}\n  s_nop 0")
    for p in range(4):
        g(f"  buffer_load_dwordx4 {v(VKD+p)}, {s(SK,4)}, {s(S_T1)} offen offset:{1024*p} lds")
    g("  s_waitcnt vmcnt(0)\n  s_barrier")
    for ks in range(4):
        for kt in range(2):
            g("  " + kread(kt, ks, 3))
    g("  s_waitcnt lgkmcnt(0)\n  s_barrier")
    for j in range(3):
        for m in qk_mfmas(j, 0, czero=True): g("  " + m)
        g("  s_nop 7")
        for qi in range(2):
            qt = 2 * j + qi
            for kt in range(2):
                b = S(0, kt, qi)
                g(f"  v_max3_f32 {v(NM(qt))}, {v(NM(qt))}, {v(b)}, {v(b+1)}")
                g(f"  v_max3_f32 {v(NM(qt))}, {v(NM(qt))}, {v(b+2)}, {v(b+3)}")
        g("  s_nop 1")
    g(f"""  s_add_u32 {s(S_T1)}, {s(S_T1)}, 16384
  s_add_u32 {s(S_CNT)}, {s(S_CNT)}, 1
  s_cmp_lt_u32 {s(S_CNT)}, 32
  s_cbranch_scc1 L_mp_loop""")
    rowmax_finish()
    g(f"  s_add_u32 m0, {s(S_M0B)}, {3*SLOT}\n  s_nop 0")
    for p in range(4):
        g(f"  buffer_load_dwordx4 {v(VKD+p)}, {s(SK,4)}, {s(S_M0B)} offen offset:{1024*p} lds")
    g("  s_waitcnt vmcnt(0)\n  s_barrier")
    for ks in range(4):
        for kt in range(2):
            g("  " + kread(kt, ks, 3))
    g("  s_waitcnt lgkmcnt(0)\n  s_branch L_join")

def gen_k2(g):
    cfg = g.cfg
    NPF = cfg.get("k2_depth", 6)
    RING = 8
    g(f".globl {K2}\n.p2align 8\n.type {K2},@function\n{K2}:")
    g("  s_cmp_ge_u32 s2, 216\n  s_cbranch_scc1 L_k2_end")
    g("  s_load_dwordx4 s[4:7], s[0:1], 32\n  s_load_dwordx2 s[32:33], s[0:1], 56")
    if cfg.get("stamps"): g(f"  s_memrealtime {s(S_STAMP,2)}")
    g("""  v_lshrrev_b32 v1, 6, v0
  v_and_b32 v2, 63, v0
  s_and_b32 s34, s2, 7                 ; b
  v_readfirstlane_b32 s3, v1
  s_lshr_b32 s35, s2, 3                ; qp*9+nt
  s_mul_i32 s36, s35, 57
  s_lshr_b32 s36, s36, 9               ; qp
  s_mul_i32 s37, s36, 9
  s_sub_u32 s37, s35, s37              ; nt
  v_lshrrev_b32 v3, 4, v2
  v_and_b32 v4, 15, v2
  v_lshlrev_b32 v10, 4, v2""")
    g("""  v_lshrrev_b32 v7, 3, v2
  v_and_b32 v8, 7, v2
  v_lshrrev_b32 v9, 1, v7
  v_and_b32 v9, 3, v9
  v_lshlrev_b32 v9, 1, v9
  v_xor_b32 v8, v8, v9
  v_lshlrev_b32 v8, 4, v8
  v_mul_u32_u24 v7, 1152, v7
  v_add_u32 v11, v7, v8
  v_add_u32 v12, 8192, v11
  v_add_u32 v13, 16384, v11
  v_add_u32 v14, 24576, v11""")
    g("""  s_mul_i32 s44, s34, 12
  s_lshl_b32 s45, s36, 2
  s_add_u32 s44, s44, s45
  s_lshl_b32 s44, s44, 17
  s_lshl_b32 s45, s3, 15
  s_add_u32 s38, s44, s45""")
    if cfg.get("k2same") in (1, 2): g("  s_lshl_b32 s38, s3, 15")
    g(f"  s_mul_i32 s40, s3, {1024*1152}")
    g("  s_lshl_b32 s41, s3, 15")
    g("  s_waitcnt lgkmcnt(0)")
    g(f"""  s_lshl_b32 s44, s37, {7 if cfg.get("k2same") not in (1, 3) else 7}
  {"s_mov_b32 s44, 0" if cfg.get("k2same") in (1, 3) else ""}
  s_add_u32 s8, s4, s44
  s_addc_u32 s9, s5, 0
  s_and_b32 s9, s9, 0xffff
  s_sub_u32 s10, {4096*1152}, s44
  s_mov_b32 s11, 0x20000
  s_mov_b32 s12, s32
  s_and_b32 s13, s33, 0xffff
  s_mov_b32 s14, {8*12*128*1024}
  s_mov_b32 s15, 0x20000
  s_mov_b32 s16, s6
  s_and_b32 s17, s7, 0xffff
  s_mov_b32 s18, {8*192*1152}
  s_mov_b32 s19, 0x20000""")
    ACC = lambda mt, nt: 32 + (mt * 4 + nt) * 4
    NB = NPF + 1
    BF = lambda k, nt: 96 + ((k % NB) * 4 + nt) * 4
    AFB = 96 + NB * 16
    AF = lambda k, mt: AFB + ((k & 1) * 4 + mt) * 4
    assert AFB + 32 <= 256
    def issue(k):
        L_ = []
        L_.append(f"s_add_u32 m0, s41, {(k % RING)*4096}")
        L_.append(f"s_add_u32 s44, s40, {k*32*1152}")
        for p in range(4):
            L_.append(f"buffer_load_dwordx4 {v(11+p)}, s[8:11], s44 offen offset:{1024*p} lds")
        for nt in range(4):
            L_.append(f"s_add_u32 s45, s38, {nt*131072 + k*1024}")
            L_.append(f"buffer_load_dwordx4 {v(BF(k,nt),4)}, v10, s[12:15], s45 offen")
        return L_
    def areads(k):
        L_ = []
        for mt in range(4):
            for half in range(2):
                L_.append(f"ds_read_b64_tr_b16 {v(AF(k,mt)+2*half,2)}, {v(16+mt)} offset:{(k%RING)*4096 + half*2048}")
        return L_
    assert NPF + 1 <= RING
    for k in range(NPF):
        for ins in issue(k): g("  " + ins)
    g("""  v_lshrrev_b32 v7, 2, v4             ; r
  v_and_b32 v8, 3, v4                  ; c
  v_lshl_add_u32 v9, v3, 2, v7         ; row = 4g+r
  v_lshrrev_b32 v5, 1, v9
  v_and_b32 v5, 3, v5
  v_lshlrev_b32 v5, 1, v5
  v_lshrrev_b32 v6, 1, v8
  v_xor_b32 v5, v5, v6
  v_lshlrev_b32 v5, 4, v5
  v_and_b32 v6, 1, v8
  v_lshl_add_u32 v5, v6, 3, v5
  v_lshl_add_u32 v5, v9, 7, v5
  v_add_u32 v16, s41, v5
  v_xor_b32 v17, 32, v16
  v_xor_b32 v18, 64, v16
  v_xor_b32 v19, 96, v16""")
    g(f"  s_waitcnt vmcnt({8*(NPF-1)})")
    g.stamp(1); g.cstamp(5)
    for ins in areads(0): g("  " + ins)
    NK = 32
    for k in range(NK):
        nxt = issue(k + NPF) if k + NPF < NK else []
        outstanding_after = min(NK, k + NPF + 1) - (k + 2)
        mf = []
        for mt in range(4):
            for nt in range(4):
                c = "0" if k == 0 else v(ACC(mt, nt), 4)
                mf.append(f"{MF} {v(ACC(mt,nt),4)}, {v(AF(k,mt),4)}, {v(BF(k,nt),4)}, {c}")
        g("  s_waitcnt lgkmcnt(0)")
        spread(g, mf[:8], nxt)
        if k + 1 < NK:
            g(f"  s_waitcnt vmcnt({8*max(0,outstanding_after)})")
            spread(g, mf[8:], areads(k + 1))
        else:
            spread(g, mf[8:], [])
    g.stamp(2); g.cstamp(6)
    PITCH = 272
    g("  s_nop 7\n  s_barrier")
    g(f"""  v_mul_u32_u24 v7, {PITCH}, v4
  v_lshl_add_u32 v7, v3, 4, v7
  s_mul_i32 s45, s3, {64*PITCH}
  v_add_u32 v7, s45, v7""")
    for mt in range(4):
        for nt in range(4):
            g(f"  ds_write_b128 v7, {v(ACC(mt,nt),4)} offset:{nt*16*PITCH + mt*64}")
    g("  s_waitcnt lgkmcnt(0)\n  s_barrier")
    g(f"""  v_lshrrev_b32 v7, 3, v0
  v_and_b32 v8, 7, v0
  v_mul_u32_u24 v9, {PITCH}, v7
  v_lshl_add_u32 v9, v8, 5, v9""")
    for i in range(2):
        for w in range(4):
            for hq in range(2):
                g(f"  ds_read_b128 {v(96 + ((i*4+w)*2+hq)*4, 4)}, v9 offset:{i*32*PITCH + w*64*PITCH + hq*16}")
    g(f"""  s_mul_i32 s45, s34, 192
  s_lshl_b32 s46, s36, 6
  s_add_u32 s45, s45, s46
  s_mul_i32 s45, s45, 1152
  s_lshl_b32 s46, s37, 7
  s_add_u32 s45, s45, s46
  v_mul_u32_u24 v7, 1152, v7
  v_lshl_add_u32 v7, v8, 4, v7""")
    for i in range(2):
        g(f"  s_waitcnt lgkmcnt({8 if i == 0 else 0})")
        b0 = 96 + i * 32
        for w in range(1, 4):
            for e in range(0, 8, 2):
                g(f"  v_pk_add_f32 {v(b0+e,2)}, {v(b0+e,2)}, {v(b0+w*8+e,2)}")
        for e in range(4):
            g(f"  v_cvt_pk_bf16_f32 {v(b0+e)}, {v(b0+2*e)}, {v(b0+2*e+1)}")
        g(f"  s_add_u32 s46, s45, {i*32*1152}")
        g(f"  buffer_store_dwordx4 {v(b0,4)}, v7, s[16:19], s46 offen")
    g("  s_waitcnt vmcnt(0)")
    if cfg.get("dbgout"):
        g.stamp(7)
        g(f"""  s_cmp_eq_u32 s2, 0
  s_cbranch_scc0 L_k2_end
  s_cmp_eq_u32 s3, 0
  s_cbranch_scc0 L_k2_end
  s_load_dwordx2 s[28:29], s[0:1], 48
  s_add_u32 s30, s32, {hex(STAMP_OFF)}
  s_addc_u32 s31, s33, 0
  v_lshlrev_b32 v24, 2, v2
  global_load_dword v20, v24, s[30:31]
  global_load_dword v21, v24, s[30:31] offset:64
  s_waitcnt vmcnt(0) lgkmcnt(0)
  v_readfirstlane_b32 s44, v21
  s_nop 3
  s_sub_u32 s60, s60, s44
  s_sub_u32 s74, s74, s44
  v_writelane_b32 v20, s60, 12
  v_writelane_b32 v20, s74, 13
  v_cmp_gt_u32 vcc, 64, v24
  s_and_saveexec_b64 s[46:47], vcc
  global_store_dword v24, v20, s[28:29]
  s_waitcnt vmcnt(0)""")
    if cfg.get("stamps") and not cfg.get("dbgout"):
        g.stamp(7)
        g(f"""  s_add_u32 s30, s32, {hex(STAMP_OFF - 0x4000)}
  s_addc_u32 s31, s33, 0
  s_lshl_b32 s44, s2, 6
  s_add_u32 s30, s30, s44
  s_addc_u32 s31, s31, 0
  v_mov_b32 v24, 0
  v_cmp_eq_u32 vcc, 0, v0
  s_and_saveexec_b64 s[46:47], vcc
  s_cbranch_execz L_k2_end""")
        for i in (0, 1, 2, 5, 6, 7):
            g(f"  v_mov_b32 v20, {s(S_STAMP+2*i)}\n  v_mov_b32 v21, {s(S_STAMP+2*i+1)}\n  global_store_dwordx2 v24, v[20:21], s[30:31] offset:{8*i}\n  s_nop 1")
        g("  s_waitcnt vmcnt(0)")
    g.label("L_k2_end")
    g("  s_endpgm")

def generate(cfg):
    global K1
    g = Gen(cfg)
    g(HEADER.rstrip())
    if cfg.get("fused"):
        K1 = "standalone__mha_block_cached__near_ridge_kernel"
        g("; @launch grid=(256,1,1) block=(256,1,1) lds=163840")
    elif cfg.get("only") != 2:
        g(f"; @launch kernel={K1} grid=(256,1,1) block=(256,1,1) lds=163840")
    if cfg.get("only") != 1 and not cfg.get("fused"):
        g(f"; @launch kernel={K2} grid=(216,1,1) block=(256,1,1) lds=131072")
    g('.amdgcn_target "amdgcn-amd-amdhsa--gfx950"\n.text')
    gen_k1(g)
    if not cfg.get("fused"): gen_k2(g)
    g('.section .rodata,"a"\n.p2align 6')
    g(kernel_desc(K1, 512, 96, 256))
    if not cfg.get("fused"):
        g(".p2align 6")
        g(kernel_desc(K2, 256, 96, 256))
    return g.text()

if __name__ == "__main__":
    import json
    out = sys.argv[1]
    cfg = json.loads(sys.argv[2]) if len(sys.argv) > 2 else {}
    open(out, "w").write(generate(cfg))
```

```python
import sys, math, struct
from asmlib import *

def f2u(x): return struct.unpack("<I", struct.pack("<f", x))[0]
def v(b, n=1): return f"v{b}" if n == 1 else f"v[{b}:{b+n-1}]"
def a(b, n=1): return f"a{b}" if n == 1 else f"a[{b}:{b+n-1}]"
def s(b, n=1): return f"s{b}" if n == 1 else f"s[{b}:{b+n-1}]"
MF = "v_mfma_f32_16x16x32_bf16"

K1 = "attn_fused_kernel"
K2 = "outproj_kernel"

VQ = 0
VS = 96
VP = 128
VNM = 144
VL = 168
VONE = 192
VKA = 196
VVA = 204
VKD = 220
VVD = 224
VL16 = 226
VX = 228
AO = 0
AK = 192
AV = 224

def Q(qt, ks): return VQ + (qt * 4 + ks) * 4
def S(p, kt=0, qi=0): return VS + 16 * p + (kt * 2 + qi) * 4
def P(p, qi=0): return VP + 8 * p + 4 * qi
def NM(qt): return VNM + 4 * qt
def L(qt): return VL + 4 * qt
def O(qt, dt): return AO + (qt * 8 + dt) * 4
def KF(kt, ks): return AK + (ks * 2 + kt) * 4
def VF(dt): return AV + 4 * dt

SK, SV, SX, SW, SO = 8, 12, 16, 20, 24
S_B, S_H, S_RG, S_KH = 34, 35, 36, 37
S_KOFF, S_VOFF, S_CNT, S_PASS, S_M0B = 38, 39, 40, 41, 43
S_T0, S_T1, S_T2, S_T3 = 44, 45, 46, 47
S_SC = 48
S_WM, S_XM, S_XSO, S_WSO = 50, 51, 54, 55
S_J = 56
S_STAMP = 60
SWO = 84
S_WOP = 58
S_TK, S_TILE = 92, 93
TKV, TKO, TKD, RDV = 248, 249, 247, 246
S_FLP = 94
FLOFF = 0x1000000

SLOT = 32768
WB = 114688
STATS = 131072
FLAGS = 163840 - 64
STAMP_OFF = 0x1fffc000
LTHR = 2.0 ** 40

class Gen(Asm):
    def __init__(self, cfg):
        super().__init__()
        self.cfg = cfg
    def stamp(self, i):
        if self.cfg.get("stamps"):
            self(f"  s_memrealtime {s(S_STAMP + 2*i, 2)}\n  s_waitcnt lgkmcnt(0)")
    def tstamp(self, i):
        if self.cfg.get("qtrace"):
            ins = "s_memtime" if self.cfg.get("qclk") else "s_memrealtime"
            self(f"  {ins} s[76:77]\n  s_waitcnt lgkmcnt(0)\n  v_writelane_b32 v250, s76, {i}")
    def cstamp(self, i):
        if self.cfg.get("stamps"):
            self(f"  s_memtime {s(S_STAMP + 2*i, 2)}\n  s_waitcnt lgkmcnt(0)")

class VM:
    def __init__(self): self.ops = []
    def issue(self, tag, n=1): self.ops += [tag] * n
    def wait_for(self, *tags):
        last = -1
        for i, t in enumerate(self.ops):
            if t in tags: last = i
        n = len(self.ops) - 1 - last
        return min(n, 63)

def spread(g, mfmas, extra, cap=2):
    n = len(mfmas)
    per = [[] for _ in range(n)]
    for idx, ins in enumerate(extra):
        per[min(n - 1, idx * n // max(1, len(extra)))].append(ins)
    for i in range(n):
        g("  " + mfmas[i])
        for ins in per[i]: g("  " + ins)

def dma_k(slot):
    L_ = [(f"s_add_u32 m0, {s(S_M0B)}, {slot*SLOT}", 4)]
    L_.append(("s_nop 0", 0))
    for p in range(4):
        L_.append((f"buffer_load_dwordx4 {v(VKD+p)}, {s(SK,4)}, {s(S_KOFF)} offen offset:{1024*p} nt lds", 4))
    L_.append((f"s_add_u32 {s(S_KOFF)}, {s(S_KOFF)}, 16384", 4))
    return L_
def dma_v(slot):
    L_ = [(f"s_add_u32 m0, {s(S_M0B)}, {slot*SLOT+16384}", 4)]
    L_.append(("s_nop 0", 0))
    for p in range(4):
        L_.append((f"buffer_load_dwordx4 {v(VVD+(p&1))}, {s(SV,4)}, {s(S_VOFF)} offen offset:{1024*p} nt lds", 4))
    L_.append((f"s_add_u32 {s(S_VOFF)}, {s(S_VOFF)}, 16384", 4))
    return L_

def pf_instrs(cfg, soff, off):
    fl = cfg.get("pfflag", "")
    if cfg.get("pfs", 128) == 128:
        return [f"buffer_load_dword v255, v254, s[96:99], {soff} offen{fl}"]
    return [f"buffer_load_dword v255, v254, s[96:99], {soff} offen{fl}", f"buffer_load_dword v255, v254, s[96:99], {soff} offen offset:64{fl}"]

def kread(kt, ks, slot):
    base = VKA + (0 if slot < 2 else 4) + ks
    return f"ds_read_b128 {a(KF(kt,ks),4)}, {v(base)} offset:{(slot&1)*SLOT + kt*4096}"
def vread(dt, half, slot):
    base = VVA + (0 if slot < 2 else 8) + dt
    return f"ds_read_b64_tr_b16 {a(VF(dt)+2*half,2)}, {v(base)} offset:{(slot&1)*SLOT + half*4096}"

def qk_mfmas(j, sp, czero=False):
    L_ = []
    for ks in range(4):
        for kt in range(2):
            for qi in range(2):
                d = S(sp, kt, qi)
                c = (("0" if czero else v(NM(2*j+qi), 4)) if ks == 0 else v(d, 4))
                L_.append(f"{MF} {v(d,4)}, {a(KF(kt,ks),4)}, {v(Q(2*j+qi,ks),4)}, {c}")
    return L_
VSUM = [0]
def pv_mfmas(j, pp):
    L_ = []
    for dt in range(8):
        for qi in range(2):
            d = O(2*j+qi, dt)
            L_.append(f"{MF} {a(d,4)}, {a(VF(dt),4)}, {v(P(pp,qi),4)}, {a(d,4)}")
    for qi in range(0 if VSUM[0] else 2):
        d = L(2*j+qi)
        L_.append(f"{MF} {v(d,4)}, {v(VONE,4)}, {v(P(pp,qi),4)}, {v(d,4)}")
    return L_

def softmax_items(p):
    exps = []; cvts = []
    for qi in range(2):
        for kt in range(2):
            for h in range(2):
                r0 = S(p, kt, qi) + 2 * h
                exps.append(f"v_exp_f32 {v(r0)}, {v(r0)}")
                exps.append(f"v_exp_f32 {v(r0+1)}, {v(r0+1)}")
                cvts.append((f"v_cvt_pk_bf16_f32 {v(P(p,qi)+2*kt+h)}, {v(r0)}, {v(r0+1)}", len(exps)))
    return exps, cvts

def stage(g, t, j):
    cfg = g.cfg
    u = 3 * t + j
    par = u & 1
    jn, jp = (j + 1) % 3, (j + 2) % 3
    slot = t & 3
    mf = qk_mfmas(jn, par ^ 1) + pv_mfmas(jp, par ^ 1)
    n = len(mf)
    fixed = {i: [] for i in range(n)}
    pre = []
    dslot = (slot + 3) & 3
    kpos = cfg.get("kdma", (0, 0)); vpos = cfg.get("vdma", (1, 24))
    def place(L_, start):
        grp = [L_[0:3]] + [[x] for x in L_[3:]]
        for i, x in enumerate(grp):
            fixed[min(n - 1, start + i)] += x
    if j == 0:
        for dt in range(8):
            fixed[16 + 2 * dt + 1] += [(vread(dt, 0, slot), 4), (vread(dt, 1, slot), 4)]
    elif j == 1:
        fixed[15] += [("s_waitcnt lgkmcnt(0)", 4)]
        i = 16
        for ks in range(4):
            for kt in range(2):
                fixed[i] += [(kread(kt, ks, slot), 4)]; i += 1
    elif j == 2:
        pre.append("s_waitcnt lgkmcnt(0)")
    if j == kpos[0]: place(dma_k(dslot), kpos[1])
    if j == vpos[0]: place(dma_v(dslot), vpos[1])
    if cfg.get("pf") and j == cfg.get("pfpos", (2, 2))[0]:
        pp_ = cfg.get("pfpos", (2, 2))[1]
        for i_, x_ in enumerate(pf_instrs(cfg, "s100", 0)): fixed[pp_ + 2 * i_] += [(x_, 4)]
        fixed[pp_ + 5] += [("s_add_u32 s100, s100, 16384", 4)]
    if cfg.get("nodma"):
        fixed = {k: [x for x in L_ if not x[0].startswith("buffer_load")] for k, L_ in fixed.items()}
    exps, cvts = softmax_items(par)
    adds = []
    if VSUM[0]:
        idx = 0
        for qi in range(2):
            for kt in range(2):
                for h in range(2):
                    r0 = S(par, kt, qi) + 2 * h
                    acc = L(2 * j + qi) + (2 * (idx & 1) if VSUM[0] == 2 else 0)
                    adds.append((f"v_pk_add_f32 {v(acc,2)}, {v(acc,2)}, {v(r0,2)}", cvts[idx][1]))
                    idx += 1
    if cfg.get("nosm"): exps, cvts = [], []
    for ins in pre: g("  " + ins)
    if j == 2 and cfg.get("trace"):
        g("  s_mov_b32 s79, m0\n  s_mov_b32 m0, s78\n  s_nop 0\n  v_writelane_b32 v250, s76, m0\n  v_writelane_b32 v251, s80, m0\n  s_mov_b32 m0, s79\n  s_nop 0")
    ei = ci = ai = 0
    FREE = cfg.get("free", 8)
    for i in range(n):
        g("  " + mf[i])
        free = FREE
        last_was_exp = False
        for ins, c in fixed[i]:
            g("  " + ins); free -= c
        emitted_e_at_start = ei
        while True:
            if ei < len(exps) and free >= 8:
                g("  " + exps[ei]); ei += 1; free -= 8; last_was_exp = True
            elif ci < len(cvts) and free >= 4 and cvts[ci][1] <= emitted_e_at_start and (ei == len(exps) or free < 8):
                g("  " + cvts[ci][0]); ci += 1; free -= 4
            elif ai < len(adds) and free >= 4 and adds[ai][1] <= emitted_e_at_start and (ei == len(exps) or free < 8):
                g("  " + adds[ai][0]); ai += 1; free -= 4
            else:
                break
        if i == n - 1:
            if ei < len(exps) or ci < len(cvts) or ai < len(adds):
                while ei < len(exps):
                    g("  " + exps[ei]); ei += 1
                g("  s_nop 0")
                while ci < len(cvts):
                    g("  " + cvts[ci][0]); ci += 1
                while ai < len(adds):
                    g("  " + adds[ai][0]); ai += 1

BB = (0, 40960, 114688)
XA = lambda hi, st: VX + hi * 2 + st
WA = lambda hi, sl: VX + 4 + hi * 2 + sl
XD = lambda p: VX + 8 + p
WD = lambda p: VX + 14 + p
TD = lambda i: VX + 18 + i
EXW, EXR = 252, 253
def qproj(g):
    cfg = g.cfg
    AF = lambda buf, mt: buf * 16 + mt * 4
    BF = lambda buf, qt: 32 + buf * 24 + qt * 4
    ACC = lambda mt, qt: 96 + (mt * 6 + qt) * 4
    xf = cfg.get("xflag", ""); wf = cfg.get("wflag", ""); tf = cfg.get("tflag", "")
    vm = VM()
    def sload(k):
        L_ = []
        bb = BB[k % 3]
        if cfg.get("rot", 1):
            if k > 0:
                L_.append(f"s_add_u32 {s(S_J)}, {s(S_J)}, 1")
                L_.append(f"s_cmp_eq_u32 {s(S_J)}, 9")
                L_.append(f"s_cselect_b32 {s(S_J)}, 0, {s(S_J)}")
            L_.append(f"s_lshl_b32 {s(S_T1)}, {s(S_J)}, 19")
            L_.append(f"s_add_u32 m0, {s(S_WM)}, {bb}")
            L_.append(f"s_add_u32 {s(S_T1)}, {s(S_T1)}, {s(S_WSO)}")
        else:
            L_.append(f"s_add_u32 m0, {s(S_WM)}, {bb}")
            L_.append(f"s_add_u32 {s(S_T1)}, {s(S_WSO)}, {k*64*8192}")
        for p in range(4):
            L_.append(f"buffer_load_dwordx4 {v(WD(p))}, {s(SW,4)}, {s(S_T1)} offen offset:{1024*p}{wf} lds")
        if cfg.get("rot", 1):
            L_.append(f"s_lshl_b32 {s(S_T0)}, {s(S_J)}, 7")
            L_.append(f"s_add_u32 m0, {s(S_XM)}, {bb}")
            L_.append(f"s_add_u32 {s(S_T0)}, {s(S_T0)}, {s(S_XSO)}")
        else:
            L_.append(f"s_add_u32 m0, {s(S_XM)}, {bb}")
            L_.append(f"s_add_u32 {s(S_T0)}, {s(S_XSO)}, {k*128}")
        for p in range(4):
            L_.append(f"buffer_load_dwordx4 {v(XD(p))}, {s(SX,4)}, {s(S_T0)} offen offset:{1024*p}{xf} lds")
        L_.append(f"s_add_u32 m0, {s(S_XM)}, {bb + 4096}")
        L_.append("s_nop 0")
        for p in range(4, 6):
            L_.append(f"buffer_load_dwordx4 {v(XD(p))}, {s(SX,4)}, {s(S_T0)} offen offset:{1024*(p-4)}{xf} lds")
        vm.issue(f"S{k}", 10)
        return L_
    def touch():
        L_ = []
        if cfg.get("ntouch", 0):
            L_.append(f"buffer_load_dword {v(248)}, {v(TD(0))}, {s(SW,4)}, 0 offen{tf}")
            L_.append(f"buffer_load_dword {v(249)}, {v(TD(1))}, {s(SX,4)}, 0 offen{tf}")
            vm.issue("T", 2)
        return L_
    def kvtouch(t, part):
        L_ = []
        pf = cfg.get("pfflag", "")
        L_.append(f"s_add_u32 m0, {s(S_M0B)}, {2*SLOT + 16384}")
        parts = (0, 1) if part == 2 else (part,)
        n = 0
        for pt in parts:
            L_.append(f"s_add_u32 s100, s101, {t*16384 + pt*4096}")
            for p in range(4):
                L_.append(f"buffer_load_dwordx4 {v(VL16)}, s[96:99], s100 offen offset:{1024*p}{pf} lds")
                n += 1
        vm.issue("T", n)
        return L_
    pft = {}
    for k_, h_, t_, pt_ in cfg.get("pft", []): pft.setdefault((k_, h_), []).append((t_, pt_))
    def quad(tag, srd, isK, goff, loff):
        L_ = [f"s_add_u32 m0, {s(S_M0B)}, {loff}", f"s_add_u32 {s(S_T0)}, {s(S_M0B)}, {goff}"]
        for p in range(4):
            vo = VKD + p if isK else VVD + (p & 1)
            L_.append(f"buffer_load_dwordx4 {v(vo)}, {s(srd,4)}, {s(S_T0)} offen offset:{1024*p} nt lds")
        vm.issue(tag, 4)
        return L_
    def PF(t):
        L_ = [f"s_add_u32 s100, s101, {t*16384}"] + pf_instrs(cfg, "s100", 0)
        vm.issue("T", len(L_) - 1)
        return L_
    def G(t):
        L_ = quad(f"G{t}", SK, True, (t + 1) * 16384, t * SLOT)
        if t == 2 and cfg.get("v2pos"):
            L_.append("s_mov_b32 s100, 0x80000")
            for p in range(4): L_.append(f"buffer_load_dword v255, {v(VKD)}, {s(SK,4)}, s100 offen")
            vm.issue("G2", 4)
        else:
            L_ += quad(f"G{t}", SV, False, t * 16384, t * SLOT + 16384)
        if cfg.get("pf"):
            L_ += PF(t + cfg["pf"])
            if t == 2: L_.append(f"s_add_u32 s100, s101, {(3 + cfg['pf'])*16384}")
        return L_
    K0 = lambda: quad("K0", SK, True, 0, 3 * SLOT)
    g.tstamp(1)
    k0pos = cfg.get("k0pos", 1)
    tpos = cfg.get("tpos", 0)
    pro = (touch() if tpos == 0 else []) + sload(0) + (touch() if tpos == 1 else [])
    if k0pos == 0: pro += K0()
    pro += sload(1)
    pfq = {}
    for k_, h_, t_ in cfg.get("pfq", []): pfq.setdefault((k_, h_), []).append(t_)
    for t_ in pfq.get((-1, 1), []): pro += PF(t_)
    for ins in pro: g("  " + ins)
    g.tstamp(2)
    cfg["_setup"](g)
    later = {(0, 0): lambda: sload(2)}
    for k in range(6): later[(k, 1)] = (lambda k=k: sload(k + 3))
    if k0pos == 1:
        later[(5, 1)] = lambda: sload(8) + K0()
    elif k0pos != 0:
        key = tuple(k0pos); prev0 = later.get(key)
        later[key] = (lambda prev0=prev0: (prev0() if prev0 else []) + K0())
    if cfg.get("v2pos"):
        key = tuple(cfg["v2pos"]); prev1 = later.get(key)
        later[key] = (lambda prev1=prev1: (prev1() if prev1 else []) + quad("V2", SV, False, 2 * 16384, 2 * SLOT + 16384))
    gp = cfg.get("gpos", [[6, 1], [8, 1], None])
    post = []
    for t in range(3):
        if gp[t] is None:
            post.append(t)
        else:
            key = tuple(gp[t]); prev = later.get(key)
            later[key] = (lambda t=t, prev=prev: (prev() if prev else []) + G(t))
    for key, ts_ in pfq.items():
        if key[0] < 0: continue
        prev = later.get(key)
        later[key] = (lambda ts_=ts_, prev=prev: (prev() if prev else []) + sum((PF(t_) for t_ in ts_), []))
    for key, ts_ in pft.items():
        if key[0] < 0: continue
        prev = later.get(key)
        later[key] = (lambda ts_=ts_, prev=prev: (prev() if prev else []) + sum((kvtouch(*t_) for t_ in ts_), []))
    def reads(k, step):
        L_ = []
        hi = 1 if k % 3 == 2 else 0
        bb = 0 if hi else BB[k % 3]
        buf = step
        for mt in range(4):
            sl, hf = mt >> 1, mt & 1
            for half in range(2):
                L_.append(f"ds_read_b64_tr_b16 {v(AF(buf,mt)+2*half,2)}, {v(WA(hi,sl))} offset:{bb + step*8192 + half*1024 + hf*8}")
            if mt == 0:
                for qt in range(6):
                    L_.append(f"ds_read_b128 {v(BF(buf,qt),4)}, {v(XA(hi,step))} offset:{bb + qt*2048}")
        return L_
    def mfmas(k, step):
        L_ = []
        st = 2 * k + step
        for mt in range(4):
            for qt in range(6):
                c = "0" if st == 0 else v(ACC(mt, qt), 4)
                L_.append(f"{MF} {v(ACC(mt,qt),4)}, {v(AF(step,mt),4)}, {v(BF(step,qt),4)}, {c}")
        return L_
    zl = [f"v_accvgpr_write_b32 {a(i)}, 0" for i in list(range(192)) + list(range(AV, AV + 32))]
    def zeros(n):
        r = zl[:n]; del zl[:n]
        return r
    def mix(*lists):
        tot = sum(len(x) for x in lists)
        out = []; idx = [0] * len(lists)
        for _ in range(tot):
            best = min((i for i in range(len(lists)) if idx[i] < len(lists[i])), key=lambda i: (idx[i] + 0.5) / len(lists[i]))
            out.append(lists[best][idx[best]]); idx[best] += 1
        return out
    def grp(L_):
        out = []; cur = []
        for ins in L_:
            cur.append(ins)
            if ins.startswith("buffer_load"):
                out.append("\n  ".join(cur)); cur = []
        if cur: out.append("\n  ".join(cur))
        return out
    def place(mf, rd, dm, zs):
        n = len(mf)
        per = [[] for _ in range(n)]; cost = [0] * n
        rstep = cfg.get("rstep", 1)
        for i, x in enumerate(rd):
            j = min(n - 1, i * rstep); per[j].append(x); cost[j] += 1
        for i, x in enumerate(dm):
            j = min(n - 1, (i * n) // max(1, len(dm)) + cfg.get("dshift", 0)); per[j].append(x); cost[j] += 1 + x.count("\n")
        for x in zs:
            j = min(range(n), key=lambda q: (cost[q], -q)); per[j].append(x); cost[j] += 1
        for i in range(n):
            g("  " + mf[i])
            for x in per[i]: g("  " + x)
    g(f"  s_waitcnt vmcnt({vm.wait_for('S0')})")
    g.tstamp(3)
    g("  s_barrier")
    g.tstamp(4)
    g.stamp(3)
    for ins in reads(0, 0): g("  " + ins)
    for k in range(9):
        g("  s_waitcnt lgkmcnt(0)")
        lat = later.get((k, 0))
        place(mfmas(k, 0), reads(k, 1), grp(lat()) if lat else [], zeros(25 if k < 8 else len(zl)))
        g("  s_waitcnt lgkmcnt(0)")
        if k < 8:
            g(f"  s_waitcnt vmcnt({vm.wait_for('S%d' % (k+1))})")
        g.tstamp(5 + 2 * k)
        g("  s_barrier")
        g.tstamp(6 + 2 * k)
        lat = later.get((k, 1))
        place(mfmas(k, 1), reads(k + 1, 0) if k < 8 else [], grp(lat()) if lat else [], [])
    assert not zl
    g.tstamp(23)
    g("  s_nop 7")
    for qt in range(6):
        for mt in range(4):
            ac = ACC(mt, qt)
            for i in (0, 2):
                g(f"  v_pk_mul_f32 {v(ac+i,2)}, {v(ac+i,2)}, {s(S_SC,2)}")
    for qt in range(6):
        for sl in range(2):
            q = Q(qt, sl)
            for hf in range(2):
                ac = ACC(2 * sl + hf, qt)
                for i in range(2):
                    g(f"  v_cvt_pk_bf16_f32 {v(q+2*hf+i)}, {v(ac+2*i)}, {v(ac+2*i+1)}")
            g(f"  ds_write_b128 {v(EXW)}, {v(q,4)} offset:{(qt*2+sl)*1024}")
    g(f"  s_waitcnt vmcnt({vm.wait_for('K0')}) lgkmcnt(0)")
    g.tstamp(24)
    g("  s_barrier")
    g.tstamp(25)
    for qt in range(6):
        for sl in range(2):
            g(f"  ds_read_b128 {v(Q(qt,2+sl),4)}, {v(EXR)} offset:{(qt*2+sl)*1024}")
    for t in post:
        for ins in G(t): g("  " + ins)

def osend(kh):
    send = [4 * (1 - kh) + i for i in range(4)]
    return [f"ds_write_b128 {v(VX+8)}, {a(O(qt,dt),4)} offset:{(qt*4+di)*1024}" for qt in range(6) for di, dt in enumerate(send)]

def factor_math():
    T = lambda qt: 128 + qt
    FO = lambda qt: 134 + qt
    FP = lambda qt: 108 + qt
    nmp = lambda qt: S(0) + 2 * qt
    lp = lambda qt: S(0) + 2 * qt + 1
    R = range(6)
    L_ = []
    L_ += [f"v_min_f32 {v(T(q))}, {v(NM(q))}, {v(nmp(q))}" for q in R]
    L_ += [f"v_sub_f32 {v(FO(q))}, {v(T(q))}, {v(NM(q))}" for q in R]
    L_ += [f"v_sub_f32 {v(FP(q))}, {v(T(q))}, {v(nmp(q))}" for q in R]
    L_ += [f"v_exp_f32 {v(FO(q))}, {v(FO(q))}" for q in R]
    L_ += [f"v_exp_f32 {v(FP(q))}, {v(FP(q))}" for q in R]
    L_ += [f"v_mul_f32 {v(T(q))}, {v(L(q))}, {v(FO(q))}" for q in R]
    L_ += [f"v_fma_f32 {v(T(q))}, {v(lp(q))}, {v(FP(q))}, {v(T(q))}" for q in R]
    L_ += [f"v_rcp_f32 {v(T(q))}, {v(T(q))}" for q in R]
    L_ += ["s_nop 0"]
    L_ += [f"v_mul_f32 {v(NM(q))}, {v(FO(q))}, {v(T(q))}" for q in R]
    L_ += [f"v_mul_f32 {v(NM(q)+2)}, {v(FP(q))}, {v(T(q))}" for q in R]
    return L_

def epilogue_variant(g, kh):
    e2 = g.cfg.get("epi2")
    keep = [4 * kh + i for i in range(4)]; send = [4 * (1 - kh) + i for i in range(4)]
    if e2:
        W = osend(kh)
        for x in W[:12]: g("  " + x)
        LS = VX + 6
        g(f"  v_add_f32 {v(LS)}, {v(L(0))}, {v(L(1))}")
        for qt in range(2, 6): g(f"  v_add_f32 {v(LS)}, {v(LS)}, {v(L(qt))}")
        g("  s_waitcnt lgkmcnt(12)")
        F = factor_math()
        k = 0
        for x in W[12:]:
            g("  " + x)
            for y in F[k:k+3]: g("  " + y)
            k += 3
        for y in F[k:]: g("  " + y)
    else:
        for x in osend(kh): g("  " + x)
    g("  s_waitcnt lgkmcnt(0)")
    g("  s_barrier")
    for qt in range(6):
        for di in range(4):
            g(f"  ds_read_b128 {v((qt*4+di)*4,4)}, {v(VX+9)} offset:{(qt*4+di)*1024}")
    CH = VX + 10
    g(f"  v_mov_b32 {v(CH)}, 0\n  v_mov_b32 {v(CH+1)}, 0")
    for qt in range(6):
        if e2:
            go, gp = NM(qt), NM(qt) + 2
            ob = 96 + (qt & 1) * 16
            m2, m3 = " op_sel_hi:[1,0]", " op_sel_hi:[1,0,1]"
        else:
            go, gp = 96 + 4 * qt, 96 + 4 * qt + 2
            ob = 120 + (qt & 1) * 16
            m2 = m3 = ""
        for di, dt in enumerate(keep):
            for r in range(4):
                g(f"  v_accvgpr_read_b32 {v(ob+4*di+r)}, {a(O(qt,dt)+r)}")
        rem = 24 - (qt + 1) * 4
        g(f"  s_waitcnt lgkmcnt({min(rem,15)})")
        pb = qt * 16
        for i in range(0, 16, 2):
            g(f"  v_pk_mul_f32 {v(pb+i,2)}, {v(pb+i,2)}, {v(gp,2)}{m2}")
        for i in range(0, 16, 2):
            g(f"  v_pk_fma_f32 {v(pb+i,2)}, {v(ob+i,2)}, {v(go,2)}, {v(pb+i,2)}{m3}")
        for i in range(8):
            g(f"  v_cvt_pk_bf16_f32 {v(ob+i)}, {v(pb+2*i)}, {v(pb+2*i+1)}")
        for sidx in range(2):
            off = qt * 32 * 4 * 1024 + (2 * kh + sidx) * 1024
            g(f"  s_add_u32 {s(S_T0)}, {s(S_T2)}, {off}")
            g(f"  buffer_store_dwordx4 {v(ob+4*sidx,4)}, {v(VL16)}, {s(SO,4)}, {s(S_T0)} offen{g.cfg.get('ostore',' sc1')}")
        for i in range(0, 16, 2):
            g(f"  v_pk_add_f32 {v(CH,2)}, {v(CH,2)}, {v(pb+i,2)}")

def fused_outproj(g):
    cfg = g.cfg
    NPF = cfg.get("f_depth", 6)
    RING = 8
    T_QP, T_NT, T_OB, T_WB, T_RING, T_HW, T_HO, T_BITS, T_HID, T_ROT, T_SP, T_OWN = 76, 77, 78, 79, 80, 81, 82, 83, 84, 85, 86, 87
    T_B = 57
    VP = (20, 21); VZ, VD, VZA = 22, 23, 24
    def publish(lbl):
        g(f"""  s_cmp_eq_u32 s3, 0
  s_cbranch_scc0 {lbl}
  s_mov_b64 exec, 0x7ffffff
  global_atomic_add {v(VZA)}, {v(VD)}, {s(S_FLP,2)}
  s_mov_b64 exec, -1""")
        g.label(lbl)
    ACC = lambda mt, nt: 32 + (mt * 4 + nt) * 4
    NB = NPF + 1
    BF = lambda k, nt: 96 + ((k % NB) * 4 + nt) * 4
    AFB = 96 + NB * 16
    AF = lambda k, mt: AFB + ((k & 1) * 4 + mt) * 4
    assert AFB + 32 <= 248 and NPF + 1 <= RING
    ops = []; done = [0]
    def issue(tag, n=1): ops.extend([tag] * n)
    def wait_for(*tags):
        last = max(i for i, t in enumerate(ops) if t in tags)
        n = len([t for t in ops[last+1:] if not (t.startswith("P") and t != "P-2")])
        assert n <= 63
        done[0] = max(done[0], last + 1)
        return f"s_waitcnt vmcnt({n})"
    def is_done(tag):
        return max(i for i, t in enumerate(ops) if t == tag) < done[0]
    osc = cfg.get("f_osc", " sc1")
    issue("ST", 12)
    g(f"""  v_mbcnt_lo_u32_b32 v2, -1, 0
  v_mbcnt_hi_u32_b32 v2, -1, v2
  {"s_and_b32 " + s(T_B) + ", s2, 7" if cfg.get("fused") == 3 else "s_mov_b32 " + s(T_B) + ", " + s(S_B)}
  s_lshl_b32 s44, {s(T_B)}, 5
  s_add_u32 s45, s44, {s(S_TILE)}
  s_lshl_b32 s45, s45, 8
  v_mov_b32 {v(VZ)}, s45
  s_lshl_b32 s44, {s(S_B)}, 13
  v_lshlrev_b32 {v(VZA)}, 8, v2
  v_add_u32 {v(VZA)}, s44, {v(VZA)}
  s_lshl_b32 {s(T_OWN)}, 1, {s(S_H)}
  v_mov_b32 {v(VD)}, {s(T_OWN)}
  s_cmp_ge_u32 {s(S_TILE)}, 27
  s_cbranch_scc1 L_notile
  global_load_dword {v(VP[0])}, {v(VZ)}, {s(S_FLP,2)} sc1""")
    issue("P-2")
    g(f"""  s_mul_i32 {s(T_QP)}, {s(S_TILE)}, 57
  s_lshr_b32 {s(T_QP)}, {s(T_QP)}, 9
  s_mul_i32 s44, {s(T_QP)}, 9
  s_sub_u32 {s(T_NT)}, {s(S_TILE)}, s44
  v_lshrrev_b32 v3, 4, v2
  v_and_b32 v4, 15, v2
  v_lshlrev_b32 v10, 4, v2
  v_lshrrev_b32 v7, 3, v2
  v_and_b32 v8, 7, v2
  v_lshrrev_b32 v9, 1, v7
  v_and_b32 v9, 3, v9
  v_lshlrev_b32 v9, 1, v9
  v_xor_b32 v8, v8, v9
  v_lshlrev_b32 v8, 4, v8
  v_mul_u32_u24 v7, 1152, v7
  v_add_u32 v11, v7, v8
  v_add_u32 v12, 8192, v11
  v_add_u32 v13, 16384, v11
  v_add_u32 v14, 24576, v11
  s_mul_i32 s44, {s(T_B)}, 12
  s_lshl_b32 s45, {s(T_QP)}, 2
  s_add_u32 s44, s44, s45
  s_lshl_b32 s44, s44, 17
  s_lshl_b32 s45, s3, 15
  s_add_u32 {s(T_OB)}, s44, s45
  s_mul_i32 {s(T_WB)}, s3, {1024*1152}
  s_lshl_b32 {s(T_RING)}, s3, 15
  {"s_add_u32 " + s(T_ROT) + ", " + s(S_H) + ", 1" if cfg.get("f_rot", 0) else "s_mov_b32 " + s(T_ROT) + ", 0"}
  s_mov_b32 {s(T_SP)}, {cfg.get("f_spin", 300000)}
  s_lshl_b32 s44, {s(T_NT)}, 7
  s_add_u32 s8, {s(S_WOP)}, s44
  s_addc_u32 s9, {s(S_WOP+1)}, 0
  s_and_b32 s9, s9, 0xffff
  s_sub_u32 s10, {4096*1152}, s44
  s_mov_b32 s11, 0x20000
  s_mov_b32 s12, s32
  s_and_b32 s13, s33, 0xffff
  s_mov_b32 s14, {8*12*128*1024}
  s_mov_b32 s15, 0x20000
  s_mov_b32 s16, s88
  s_and_b32 s17, s89, 0xffff
  s_mov_b32 s18, {8*192*1152}
  s_mov_b32 s19, 0x20000""")
    def issueD(k):
        L_ = []
        i, ks = k >> 2, k & 3
        if ks == 0:
            L_ += [f"s_add_u32 s46, {s(T_ROT)}, {i}", "s_and_b32 s46, s46, 7", f"s_mul_i32 {s(T_HW)}, s46, {128*1152}",
                   f"s_add_u32 {s(T_HW)}, {s(T_HW)}, {s(T_WB)}"]
        L_.append(f"s_add_u32 m0, {s(T_RING)}, {(k % RING)*4096}")
        L_.append(f"s_add_u32 s44, {s(T_HW)}, {ks*32*1152}")
        for p in range(4):
            L_.append(f"buffer_load_dwordx4 {v(11+p)}, s[8:11], s44 offen offset:{1024*p} lds")
        issue(f"D{k}", 4)
        return L_
    def issueB(k):
        L_ = []
        i, ks = k >> 2, k & 3
        if ks == 0:
            blk = [f"s_add_u32 s46, {s(T_ROT)}, {i}", "s_and_b32 s46, s46, 7", f"s_lshl_b32 {s(T_HO)}, s46, 12",
                   f"s_lshl_b32 {s(T_HID)}, s3, 3", f"s_add_u32 {s(T_HID)}, {s(T_HID)}, s46",
                   f"s_add_u32 {s(T_HO)}, {s(T_HO)}, {s(T_OB)}"]
            if i >= 2:
                assert is_done(f"P{i-2}"), (k, i)
                blk += [f"v_readfirstlane_b32 s46, {v(VP[i & 1])}", "s_nop 0", f"s_or_b32 {s(T_BITS)}, {s(T_BITS)}, s46"]
            blk += [f"s_bitcmp1_b32 {s(T_BITS)}, {s(T_HID)}", f"s_cbranch_scc1 L_fok{i}",
                    f"L_fsp{i}:", f"s_sleep {cfg.get('f_sleep', 1)}", f"global_load_dword {v(VP[i & 1])}, {v(VZ)}, {s(S_FLP,2)} sc1", "s_waitcnt vmcnt(0)",
                    f"v_readfirstlane_b32 s46, {v(VP[i & 1])}", f"s_sub_u32 {s(T_SP)}, {s(T_SP)}, 1",
                    f"s_or_b32 {s(T_BITS)}, {s(T_BITS)}, s46", f"s_cmp_eq_u32 {s(T_SP)}, 0", f"s_cbranch_scc1 L_fok{i}",
                    f"s_bitcmp1_b32 {s(T_BITS)}, {s(T_HID)}", f"s_cbranch_scc0 L_fsp{i}", f"L_fok{i}:"]
            if i + 2 < 8:
                blk.append(f"global_load_dword {v(VP[i & 1])}, {v(VZ)}, {s(S_FLP,2)} sc1")
                issue(f"P{i}")
            L_.append("\n  ".join(blk))
        for nt in range(4):
            L_.append(f"s_add_u32 s45, {s(T_HO)}, {nt*131072 + ks*1024}\n  buffer_load_dwordx4 {v(BF(k,nt),4)}, v10, s[12:15], s45 offen{osc}")
        issue(f"B{k}", 4)
        return L_
    def areads(k):
        L_ = []
        for mt in range(4):
            for half in range(2):
                L_.append(f"ds_read_b64_tr_b16 {v(AF(k,mt)+2*half,2)}, {v(16+mt)} offset:{(k%RING)*4096 + half*2048}")
        return L_
    for k in range(NPF):
        for ins in issueD(k): g("  " + ins)
    g("""  v_lshrrev_b32 v7, 2, v4
  v_and_b32 v8, 3, v4
  v_lshl_add_u32 v9, v3, 2, v7
  v_lshrrev_b32 v5, 1, v9
  v_and_b32 v5, 3, v5
  v_lshlrev_b32 v5, 1, v5
  v_lshrrev_b32 v6, 1, v8
  v_xor_b32 v5, v5, v6
  v_lshlrev_b32 v5, 4, v5
  v_and_b32 v6, 1, v8
  v_lshl_add_u32 v5, v6, 3, v5
  v_lshl_add_u32 v5, v9, 7, v5""")
    g(f"""  v_add_u32 v16, {s(T_RING)}, v5
  v_xor_b32 v17, 32, v16
  v_xor_b32 v18, 64, v16
  v_xor_b32 v19, 96, v16""")
    g("  " + wait_for("ST"))
    g("  s_barrier")
    publish("L_nopub")
    g("  " + wait_for("P-2"))
    if cfg.get("fdbg"): g.stamp(5)
    g(f"  v_readfirstlane_b32 {s(T_BITS)}, {v(VP[0])}")
    if cfg.get("fused") != 3: g(f"  s_nop 0\n  s_or_b32 {s(T_BITS)}, {s(T_BITS)}, {s(T_OWN)}")
    for k in range(NPF):
        for ins in issueB(k): g("  " + ins)
    g("  " + wait_for("D0", "B0"))
    for ins in areads(0): g("  " + ins)
    NK = 32
    for k in range(NK):
        nxt = (issueD(k + NPF) + issueB(k + NPF)) if k + NPF < NK else []
        mf = []
        for mt in range(4):
            for nt in range(4):
                c = "0" if k == 0 else v(ACC(mt, nt), 4)
                mf.append(f"{MF} {v(ACC(mt,nt),4)}, {v(AF(k,mt),4)}, {v(BF(k,nt),4)}, {c}")
        g("  s_waitcnt lgkmcnt(0)")
        grp = []; cur = []
        for ins in nxt:
            cur.append(ins)
            if "buffer_load" in ins or "global_load" in ins:
                grp.append("\n  ".join(cur)); cur = []
        assert not cur
        spread(g, mf[:8], grp)
        if k + 1 < NK:
            g("  " + wait_for(f"D{k+1}", f"B{k+1}"))
            spread(g, mf[8:], areads(k + 1))
        else:
            spread(g, mf[8:], [])
    g.stamp(3)
    if cfg.get("fdbg"): g(f"  s_sub_u32 s72, {cfg.get('f_spin', 300000)}, {s(T_SP)}\n  s_add_u32 s72, s72, 1\n  s_mov_b32 s73, 0")
    PITCH = 272
    g("  s_nop 7\n  s_barrier")
    g(f"""  v_mul_u32_u24 v7, {PITCH}, v4
  v_lshl_add_u32 v7, v3, 4, v7
  s_mul_i32 s45, s3, {64*PITCH}
  v_add_u32 v7, s45, v7""")
    for mt in range(4):
        for nt in range(4):
            g(f"  ds_write_b128 v7, {v(ACC(mt,nt),4)} offset:{nt*16*PITCH + mt*64}")
    g(f"""  s_lshl_b32 s45, s3, 6
  v_add_u32 v0, s45, v2
  s_waitcnt lgkmcnt(0)
  s_barrier
  v_lshrrev_b32 v7, 3, v0
  v_and_b32 v8, 7, v0
  v_mul_u32_u24 v9, {PITCH}, v7
  v_lshl_add_u32 v9, v8, 5, v9""")
    for i in range(2):
        for w in range(4):
            for hq in range(2):
                g(f"  ds_read_b128 {v(96 + ((i*4+w)*2+hq)*4, 4)}, v9 offset:{i*32*PITCH + w*64*PITCH + hq*16}")
    g(f"""  s_mul_i32 s45, {s(T_B)}, 192
  s_lshl_b32 s46, {s(T_QP)}, 6
  s_add_u32 s45, s45, s46
  s_mul_i32 s45, s45, 1152
  s_lshl_b32 s46, {s(T_NT)}, 7
  s_add_u32 s45, s45, s46
  v_mul_u32_u24 v7, 1152, v7
  v_lshl_add_u32 v7, v8, 4, v7""")
    for i in range(2):
        g(f"  s_waitcnt lgkmcnt({8 if i == 0 else 0})")
        b0 = 96 + i * 32
        for w in range(1, 4):
            for e in range(0, 8, 2):
                g(f"  v_pk_add_f32 {v(b0+e,2)}, {v(b0+e,2)}, {v(b0+w*8+e,2)}")
        for e in range(4):
            g(f"  v_cvt_pk_bf16_f32 {v(b0+e)}, {v(b0+2*e)}, {v(b0+2*e+1)}")
        g(f"  s_add_u32 s46, s45, {i*32*1152}")
        g(f"  buffer_store_dwordx4 {v(b0,4)}, v7, s[16:19], s46 offen")
    g("  s_branch L_fin")
    g.label("L_notile")
    g("  s_waitcnt vmcnt(0)\n  s_barrier")
    publish("L_pub2")

F_DV, F_TR, F_BV, F_VZ, F_VZA, F_VD = 196, 200, 204, 208, 209, 210
F_P2 = 211
T_QP, T_NT, T_OB, T_WB, T_RING, T_HW, T_HO, T_BITS, T_DONE, T_H, T_SP, T_OWN = 76, 77, 78, 79, 80, 81, 82, 83, 84, 85, 86, 87
T_B = 57
def fused2_setup(g, part=0):
    cfg = g.cfg
    t0, t1, t2, t3, t4, t5 = 240, 241, 242, 243, 244, 245
    if part in (0, 1):
        g(f"""  s_and_b32 {s(T_B)}, s2, 7
  s_lshl_b32 s44, {s(T_B)}, 5
  s_add_u32 s45, s44, {s(S_TILE)}
  s_lshl_b32 s45, s45, 8
  v_mov_b32 {v(F_VZ)}, s45""")
        if cfg.get("f_early", 1):
            g(f"  global_load_dword {v(F_P2)}, {v(F_VZ)}, {s(S_FLP,2)} sc1")
    if part == 1: return
    g(f"""  v_lshrrev_b32 {v(t0)}, 4, {v(VL16)}
  s_lshl_b32 s44, {s(S_B)}, 13""")
    g(f"""  v_lshlrev_b32 {v(F_VZA)}, 8, {v(t0)}
  v_add_u32 {v(F_VZA)}, s44, {v(F_VZA)}
  s_lshl_b32 {s(T_OWN)}, 1, {s(S_H)}
  v_mov_b32 {v(F_VD)}, {s(T_OWN)}
  s_mul_i32 {s(T_QP)}, {s(S_TILE)}, 57
  s_lshr_b32 {s(T_QP)}, {s(T_QP)}, 9
  s_mul_i32 s44, {s(T_QP)}, 9
  s_sub_u32 {s(T_NT)}, {s(S_TILE)}, s44
  v_lshrrev_b32 {v(t1)}, 3, {v(t0)}
  v_and_b32 {v(t2)}, 7, {v(t0)}
  v_lshrrev_b32 {v(t3)}, 1, {v(t1)}
  v_and_b32 {v(t3)}, 3, {v(t3)}
  v_lshlrev_b32 {v(t3)}, 1, {v(t3)}
  v_xor_b32 {v(t2)}, {v(t2)}, {v(t3)}
  v_lshlrev_b32 {v(t2)}, 4, {v(t2)}
  v_mul_u32_u24 {v(t1)}, 1152, {v(t1)}
  v_add_u32 {v(F_DV)}, {v(t1)}, {v(t2)}
  v_add_u32 {v(F_DV+1)}, 8192, {v(F_DV)}
  v_add_u32 {v(F_DV+2)}, 16384, {v(F_DV)}
  v_add_u32 {v(F_DV+3)}, 24576, {v(F_DV)}
  s_mul_i32 s44, {s(T_B)}, 12
  s_lshl_b32 s45, {s(T_QP)}, 2
  s_add_u32 s44, s44, s45
  s_lshl_b32 s44, s44, 17
  s_lshl_b32 s45, s3, 10
  s_add_u32 {s(T_OB)}, s44, s45
  s_mul_i32 {s(T_WB)}, s3, {32*1152}
  s_xor_b32 s45, s3, 2
  s_mul_i32 {s(T_RING)}, s45, 24576
  s_mov_b32 {s(T_SP)}, {cfg.get("f_spin", 300000)}
  s_mov_b32 {s(T_DONE)}, 0
  v_lshrrev_b32 {v(t1)}, 4, {v(t0)}
  v_and_b32 {v(t2)}, 15, {v(t0)}
  v_lshrrev_b32 {v(t3)}, 2, {v(t2)}
  v_and_b32 {v(t4)}, 3, {v(t2)}
  v_lshl_add_u32 {v(t5)}, {v(t1)}, 2, {v(t3)}
  v_lshrrev_b32 {v(t1)}, 1, {v(t5)}
  v_and_b32 {v(t1)}, 3, {v(t1)}
  v_lshlrev_b32 {v(t1)}, 1, {v(t1)}
  v_lshrrev_b32 {v(t2)}, 1, {v(t4)}
  v_xor_b32 {v(t1)}, {v(t1)}, {v(t2)}
  v_lshlrev_b32 {v(t1)}, 4, {v(t1)}
  v_and_b32 {v(t2)}, 1, {v(t4)}
  v_lshl_add_u32 {v(t1)}, {v(t2)}, 3, {v(t1)}
  v_lshl_add_u32 {v(t1)}, {v(t5)}, 7, {v(t1)}
  v_add_u32 {v(F_TR)}, {s(T_RING)}, {v(t1)}
  v_xor_b32 {v(F_TR+1)}, 32, {v(F_TR)}
  v_xor_b32 {v(F_TR+2)}, 64, {v(F_TR)}
  v_xor_b32 {v(F_TR+3)}, 96, {v(F_TR)}
  v_mov_b32 {v(F_BV)}, {v(VL16)}
  v_add_u32 {v(F_BV+1)}, {131072}, {v(VL16)}
  v_add_u32 {v(F_BV+2)}, {2*131072}, {v(VL16)}
  v_add_u32 {v(F_BV+3)}, {3*131072}, {v(VL16)}""")

def fused_outproj2(g):
    cfg = g.cfg
    NPF = cfg.get("f_depth", 6)
    RING = NPF
    assert RING * 4096 <= 24576
    NB = NPF + 1
    ACC = lambda mt, nt: (mt * 4 + nt) * 4
    AF = lambda k, mt: 64 + ((k & 1) * 4 + mt) * 4
    BF = lambda k, nt: ((k % NB) * 4 + nt) * 4
    VPB = NB * 16
    VP = lambda n: VPB + (n % NB)
    VSP = VPB + NB
    NF = cfg.get("f_nf", 2)
    class Tr:
        def __init__(self): self.ops = []
    tr = Tr()
    def issue(tag, n=1): tr.ops.extend([tag] * n)
    def wait_for(*tags):
        last = max(i for i, t in enumerate(tr.ops) if t in tags)
        n = len(tr.ops) - 1 - last
        assert n <= 63
        return f"s_waitcnt vmcnt({n})"
    def publish(lbl):
        g(f"""  s_cmp_eq_u32 s3, 0
  s_cbranch_scc0 {lbl}
  s_mov_b64 exec, 0x7ffffff
  global_atomic_add {v(F_VZA)}, {v(F_VD)}, {s(S_FLP,2)}
  s_mov_b64 exec, -1""")
        g.label(lbl)
    osc = cfg.get("f_osc", " sc1")
    NK = 32
    def block(n, sfx=""):
        L_ = []
        blk = []
        if n >= NPF:
            blk += [f"v_readfirstlane_b32 s46, {v(VP(n - NPF))}", "s_nop 0", f"s_or_b32 {s(T_BITS)}, {s(T_BITS)}, s46"]
        blk += [f"s_andn2_b32 s46, {s(T_BITS)}, {s(T_DONE)}", f"s_cbranch_scc1 L_fok{n}{sfx}",
                f"L_fsp{n}{sfx}:", f"s_sleep {cfg.get('f_sleep', 1)}", f"global_load_dword {v(VSP)}, {v(F_VZ)}, {s(S_FLP,2)} sc1", "s_waitcnt vmcnt(0)",
                f"v_readfirstlane_b32 s46, {v(VSP)}", f"s_sub_u32 {s(T_SP)}, {s(T_SP)}, 1",
                f"s_cselect_b32 s46, -1, s46",
                f"s_or_b32 {s(T_BITS)}, {s(T_BITS)}, s46",
                f"s_andn2_b32 s46, {s(T_BITS)}, {s(T_DONE)}",
                f"s_cbranch_scc0 L_fsp{n}{sfx}", f"L_fok{n}{sfx}:",
                f"s_ff1_i32_b32 {s(T_H)}, s46", f"s_add_u32 m0, {s(T_RING)}, {(n % RING)*4096}",
                f"s_mul_i32 {s(T_HW)}, {s(T_H)}, {128*1152}", f"s_bitset1_b32 {s(T_DONE)}, {s(T_H)}",
                f"s_add_u32 {s(T_HW)}, {s(T_HW)}, {s(T_WB)}", f"s_lshl_b32 {s(T_HO)}, {s(T_H)}, 12"]
        if n + NPF < NK and n % cfg.get("f_pstep", 1) == 0:
            blk.append(f"global_load_dword {v(VP(n))}, {v(F_VZ)}, {s(S_FLP,2)} sc1")
            issue(f"P{n}")
        elif n + NPF < NK:
            blk.append(f"v_mov_b32 {v(VP(n))}, 0")
        blk.append(f"s_add_u32 {s(T_HO)}, {s(T_HO)}, {s(T_OB)}")
        blk.append(f"buffer_load_dwordx4 {v(F_DV)}, s[8:11], {s(T_HW)} offen lds")
        L_.append("\n  ".join(blk))
        for p in range(1, 4):
            L_.append(f"buffer_load_dwordx4 {v(F_DV+p)}, s[8:11], {s(T_HW)} offen offset:{1024*p} lds")
        issue(f"D{n}", 4)
        for nt in range(4):
            L_.append(f"buffer_load_dwordx4 {v(BF(n,nt),4)}, {v(F_BV+nt)}, s[12:15], {s(T_HO)} offen{osc}")
        issue(f"B{n}", 4)
        return L_
    def areads(k):
        L_ = []
        for mt in range(4):
            for half in range(2):
                L_.append(f"ds_read_b64_tr_b16 {a(AF(k,mt)+2*half,2)}, {v(F_TR+mt)} offset:{(k%RING)*4096 + half*2048}")
        return L_
    g(f"""  s_lshl_b32 s44, {s(T_NT)}, 7
  s_add_u32 s8, {s(S_WOP)}, s44
  s_addc_u32 s9, {s(S_WOP+1)}, 0
  s_and_b32 s9, s9, 0xffff
  s_sub_u32 s10, {4096*1152}, s44
  s_mov_b32 s11, 0x20000
  s_mov_b32 s12, s32
  s_and_b32 s13, s33, 0xffff
  s_mov_b32 s14, {8*12*128*1024}
  s_mov_b32 s15, 0x20000
  s_mov_b32 s16, s88
  s_and_b32 s17, s89, 0xffff
  s_mov_b32 s18, {8*192*1152}
  s_mov_b32 s19, 0x20000
  s_cmp_ge_u32 {s(S_TILE)}, 27
  s_cbranch_scc1 L_notile""")
    early = cfg.get("f_early", 1)
    if early:
        issue("P-2"); issue("ST", 12)
        g("  " + wait_for("P-2"))
        g(f"""  v_readfirstlane_b32 {s(T_BITS)}, {v(F_P2)}
  s_nop 0
  s_bcnt1_i32_b32 s44, {s(T_BITS)}
  s_cmp_ge_u32 s44, {NF}
  s_cbranch_scc1 L_pathF""")
    else:
        issue("ST", 12)
        g(f"  s_mov_b32 {s(T_BITS)}, 0")
    save = list(tr.ops)
    g("  s_waitcnt vmcnt(0)")
    if cfg.get("f_st1") in ("postST", "preST"): g.stamp(1)
    g("  s_barrier")
    publish("L_pubS")
    for n in range(NF):
        for ins in block(n, "s"): g("  " + ins)
    if early:
        g("  s_branch L_pro2")
        after_s = list(tr.ops)
        tr.ops = save
        g.label("L_pathF")
        if cfg.get("fdbg"): g(f"  s_sub_u32 {s(T_SP)}, {s(T_SP)}, 1000")
        for n in range(NF):
            for ins in block(n, "f"): g("  " + ins)
        if cfg.get("f_st1") == "preST": g.stamp(1)
        g("  " + wait_for("ST"))
        if cfg.get("f_st1") == "postST": g.stamp(1)
        g("  s_barrier")
        publish("L_pubF")
        assert tr.ops == after_s
        g.label("L_pro2")
    if cfg.get("f_st1") == "pro2": g.stamp(1)
    for n in range(NF, NPF):
        for ins in block(n): g("  " + ins)
    g("  " + wait_for("D0", "B0"))
    if cfg.get("fdbg"): g.stamp(5)
    if cfg.get("f_cyc"): g("  s_memtime s[72:73]\n  s_waitcnt lgkmcnt(0)")
    for ins in areads(0): g("  " + ins)
    for k in range(NK):
        if cfg.get("f_st1") == k: g.stamp(1)
        nxt = block(k + NPF) if k + NPF < NK else []
        mf = []
        for mt in range(4):
            for nt in range(4):
                c = "0" if k == 0 else a(ACC(mt, nt), 4)
                mf.append(f"{MF} {a(ACC(mt,nt),4)}, {a(AF(k,mt),4)}, {v(BF(k,nt),4)}, {c}")
        g("  s_waitcnt lgkmcnt(0)")
        spread(g, mf[:8], nxt)
        if k + 1 < NK:
            g("  " + wait_for(f"D{k+1}", f"B{k+1}"))
            spread(g, mf[8:], areads(k + 1))
        else:
            spread(g, mf[8:], [])
    g.stamp(3)
    if cfg.get("f_cyc"): g("  s_memtime s[44:45]\n  s_waitcnt lgkmcnt(0)\n  s_sub_u32 s72, s44, s72\n  s_add_u32 s72, s72, 1\n  s_mov_b32 s73, 0")
    elif cfg.get("fdbg"): g(f"  s_sub_u32 s72, {cfg.get('f_spin', 300000)}, {s(T_SP)}\n  s_add_u32 s72, s72, 1\n  s_mov_b32 s73, 0")
    PITCH = 272
    g(f"""  v_lshrrev_b32 v2, 4, {v(VL16)}
  v_lshrrev_b32 v3, 4, v2
  v_and_b32 v4, 15, v2
  v_mul_u32_u24 v7, {PITCH}, v4
  v_lshl_add_u32 v7, v3, 4, v7
  s_mul_i32 s45, s3, {64*PITCH}
  v_add_u32 v7, s45, v7
  s_nop 4
  s_barrier""")
    for mt in range(4):
        for nt in range(4):
            g(f"  ds_write_b128 v7, {a(ACC(mt,nt),4)} offset:{nt*16*PITCH + mt*64}")
    g(f"""  s_lshl_b32 s45, s3, 6
  v_add_u32 v0, s45, v2
  v_lshrrev_b32 v7, 3, v0
  v_and_b32 v8, 7, v0
  v_mul_u32_u24 v9, {PITCH}, v7
  v_lshl_add_u32 v9, v8, 5, v9
  s_mul_i32 s45, {s(T_B)}, 192
  s_lshl_b32 s46, {s(T_QP)}, 6
  s_add_u32 s45, s45, s46
  s_mul_i32 s45, s45, 1152
  s_lshl_b32 s46, {s(T_NT)}, 7
  s_add_u32 s45, s45, s46
  v_mul_u32_u24 v7, 1152, v7
  v_lshl_add_u32 v7, v8, 4, v7
  s_waitcnt lgkmcnt(0)
  s_barrier""")
    for i in range(2):
        for w in range(4):
            for hq in range(2):
                g(f"  ds_read_b128 {v(96 + ((i*4+w)*2+hq)*4, 4)}, v9 offset:{i*32*PITCH + w*64*PITCH + hq*16}")
    for i in range(2):
        g(f"  s_waitcnt lgkmcnt({8 if i == 0 else 0})")
        b0 = 96 + i * 32
        for w in range(1, 4):
            for e in range(0, 8, 2):
                g(f"  v_pk_add_f32 {v(b0+e,2)}, {v(b0+e,2)}, {v(b0+w*8+e,2)}")
        for e in range(4):
            g(f"  v_cvt_pk_bf16_f32 {v(b0+e)}, {v(b0+2*e)}, {v(b0+2*e+1)}")
        g(f"  s_add_u32 s46, s45, {i*32*1152}")
        g(f"  buffer_store_dwordx4 {v(b0,4)}, v7, s[16:19], s46 offen")
    g("  s_branch L_fin")
    g.label("L_notile")
    g("  s_waitcnt vmcnt(0)\n  s_barrier")
    publish("L_pub2")

def gen_k1(g):
    cfg = g.cfg
    g(f".globl {K1}\n.p2align 8\n.type {K1},@function\n{K1}:")
    g("  s_cmp_ge_u32 s2, 256\n  s_cbranch_scc1 L_k1_end")
    g(f"  s_load_dwordx4 s[4:7], s[0:1], 0\n  s_load_dwordx4 s[28:31], s[0:1], 16\n  s_load_dwordx2 s[32:33], s[0:1], 56\n  s_load_dwordx2 {s(S_WOP,2)}, s[0:1], 32")
    fused = cfg.get("fused", 0)
    if fused: g("  s_load_dwordx4 s[88:91], s[0:1], 40")
    if cfg.get("stamps"): g(f"  s_memrealtime {s(S_STAMP,2)}")
    if cfg.get("qtrace"): g("  v_mov_b32 v250, 0\n  v_mov_b32 v251, 0")
    g(f"  v_lshrrev_b32 v1, 6, v0\n  s_mov_b32 {s(S_PASS)}, 0\n  v_readfirstlane_b32 s3, v1")
    mm = cfg.get("map", 3)
    g("  s_and_b32 s44, s2, 7\n  s_lshr_b32 s45, s2, 3")
    if mm == 2:
        g(f"  s_mov_b32 {s(S_B)}, s44\n  s_mov_b32 {s(S_H)}, s45")
    elif mm == 3:
        g(f"""  s_and_b32 s46, s44, 1
  s_lshl_b32 s46, s46, 2
  s_and_b32 s47, s45, 3
  s_add_u32 {s(S_B)}, s46, s47
  s_lshr_b32 s46, s44, 1
  s_lshl_b32 s46, s46, 3
  s_lshr_b32 s47, s45, 2
  s_add_u32 {s(S_H)}, s46, s47""")
    elif mm == 0:
        g(f"  s_lshr_b32 {s(S_B)}, s2, 5\n  s_and_b32 {s(S_H)}, s2, 31")
    g(f"""  s_and_b32 {s(S_RG)}, s3, 1
  s_lshr_b32 {s(S_KH)}, s3, 1
  s_lshl_b32 s44, {s(S_B)}, 5
  s_add_u32 s44, s44, {s(S_H)}
  s_lshl_b32 s44, s44, 19
  s_mul_i32 s45, {s(S_B)}, 221184
  s_lshl_b32 s46, {s(S_H)}, 8
  s_waitcnt lgkmcnt(0)
  s_add_u32 s16, s4, s45
  s_addc_u32 s17, s5, 0
  s_and_b32 s17, s17, 0xffff
  s_mov_b32 s18, 221184
  s_mov_b32 s19, 0x20000
  s_add_u32 s20, s30, s46
  s_addc_u32 s21, s31, 0
  s_and_b32 s21, s21, 0xffff
  s_sub_u32 s22, {576*8192}, s46
  s_mov_b32 s23, 0x20000
  s_add_u32 s8, s6, s44
  s_addc_u32 s9, s7, 0
  s_and_b32 s9, s9, 0xffff
  s_mov_b32 s10, 0x80000
  s_mov_b32 s11, 0x20000
  s_add_u32 s12, s28, s44
  s_addc_u32 s13, s29, 0
  s_and_b32 s13, s13, 0xffff
  s_mov_b32 s14, 0x80000
  s_mov_b32 s15, 0x20000""")
    if fused:
        g(f"""  s_cmp_eq_u32 s3, 0
  s_cselect_b32 {s(S_TK)}, {cfg.get("tkit", 7)}, 99
  s_add_u32 {s(S_FLP)}, s32, {hex(FLOFF)}
  s_addc_u32 {s(S_FLP+1)}, s33, 0
  s_or_b32 s44, s3, {s(S_H)}
  s_cmp_eq_u32 s44, 0
  s_cbranch_scc0 L_nozero
  v_mbcnt_lo_u32_b32 v2, -1, 0
  v_lshlrev_b32 v2, 8, v2
  s_lshl_b32 s44, {s(S_B)}, 13
  v_add_u32 v2, s44, v2
  v_mov_b32 v3, 0
  s_mov_b32 exec_hi, 0
  global_store_dword v2, v3, {s(S_FLP,2)} sc1
  s_mov_b64 exec, -1""")
        g.label("L_nozero")
    g.label("L_restart")
    g("""  v_mbcnt_lo_u32_b32 v2, -1, 0
  v_mbcnt_hi_u32_b32 v2, -1, v2
  v_lshrrev_b32 v3, 4, v2
  v_and_b32 v4, 15, v2""")
    g(f"""  v_lshrrev_b32 v5, 3, v2
  v_mul_u32_u24 v5, 1152, v5
  v_and_b32 v6, 7, v2
  v_xor_b32 v6, v6, v3
  v_lshl_add_u32 {v(XD(0))}, v6, 4, v5
  v_xor_b32 v6, 4, v6
  v_lshl_add_u32 v7, v6, 4, v5""")
    for p in range(1, 6):
        src_ = "v7" if p & 1 else v(XD(0))
        g(f"  v_add_u32 {v(XD(p))}, {p*9216 - (p&3)*1024}, {src_}")
    g(f"""  v_lshlrev_b32 v5, 2, v3
  v_xor_b32 v5, v5, v4
  v_lshlrev_b32 v5, 4, v5
  v_lshl_add_u32 {v(WD(0))}, v3, 13, v5""")
    for p in range(1, 4):
        g(f"  v_add_u32 {v(WD(p))}, {p*(4*8192-1024)}, {v(WD(0))}")
    g(f"""  s_mul_i32 {s(S_XM)}, s3, 6144
  s_mul_i32 {s(S_XSO)}, s3, {48*1152}
  s_lshl_b32 {s(S_WM)}, s3, 12
  s_add_u32 {s(S_WM)}, {s(S_WM)}, 24576
  s_lshl_b32 {s(S_WSO)}, s3, 17
  s_lshl_b32 {s(S_M0B)}, s3, 12""")
    ra, rb = cfg.get("rotab", (2, 1))
    g(f"""  s_and_b32 s44, {s(S_B)}, 3
  s_mul_i32 s44, s44, {ra}
  s_and_b32 s45, {s(S_H)}, 7
  s_mul_i32 s45, s45, {rb}
  s_add_u32 s44, s44, s45
  s_sub_u32 s45, s44, 9
  s_cmp_ge_u32 s44, 9
  s_cselect_b32 {s(S_J)}, s45, s44""")
    g(f"""  s_and_b32 s44, {s(S_B)}, 3
  s_lshl_b32 s44, s44, 2
  s_add_u32 s44, s44, s3
  s_add_u32 s44, s44, 2
  s_lshl_b32 s44, s44, 18
  v_lshrrev_b32 v5, 1, v2
  v_lshlrev_b32 v5, 13, v5
  v_and_b32 v6, 1, v2
  v_lshl_add_u32 v5, v6, 7, v5
  v_add_u32 {v(TD(0))}, s44, v5
  s_and_b32 s44, {s(S_H)}, 7
  s_lshl_b32 s44, s44, 2
  s_add_u32 s44, s44, s3
  s_mul_i32 s44, s44, {6*1152}
  s_add_u32 s44, s44, 128
  v_lshrrev_b32 v5, 3, v2
  v_mul_u32_u24 v5, 1152, v5
  v_and_b32 v6, 7, v2
  v_lshl_add_u32 v5, v6, 7, v5
  v_add_u32 {v(TD(1))}, s44, v5""")
    if cfg.get("pft"):
        g(f"""  v_lshlrev_b32 {v(TD(0))}, 7, v2
  v_lshlrev_b32 {v(TD(1))}, 6, v2
  s_cmp_lt_u32 s3, 2
  s_cselect_b32 s96, s8, s12
  s_cselect_b32 s97, s9, s13
  s_cselect_b32 s101, 16384, 0
  s_mov_b32 s98, 0x80000
  s_mov_b32 s99, 0x20000
  s_and_b32 s100, s3, 1
  s_lshl_b32 s100, s100, 13
  s_add_u32 s101, s101, s100""")
    if cfg.get("pf"):
        g(f"""  v_lshlrev_b32 v254, 7, v2
  s_cmp_lt_u32 s3, 2
  s_cselect_b32 s96, s8, s12
  s_cselect_b32 s97, s9, s13
  s_cselect_b32 s101, 16384, 0
  s_mov_b32 s98, 0x80000
  s_mov_b32 s99, 0x20000
  s_and_b32 s100, s3, 1
  s_lshl_b32 s100, s100, 13
  s_add_u32 s101, s101, s100""")
    for p in range(4):
        g(f"""  v_add_u32 v7, {4*p}, v3
  v_xor_b32 v7, v7, v4
  v_lshlrev_b32 v7, 4, v7
  v_lshl_add_u32 {v(VKD+p)}, v3, 8, v7""")
    for p in range(2):
        g(f"""  v_add_u32 v7, {4*p}, v3
  v_lshlrev_b32 v7, 1, v7
  v_xor_b32 v7, v7, v4
  v_lshlrev_b32 v7, 4, v7
  v_lshl_add_u32 {v(VVD+p)}, v3, 8, v7""")

    def setup(g):
        g("  v_lshrrev_b32 v9, 2, v4\n  v_and_b32 v10, 3, v4")
        g(f"""  v_lshlrev_b32 v11, 2, v9
  v_xor_b32 v11, v11, v10
  v_lshlrev_b32 v11, 4, v11
  v_lshl_add_u32 v12, v3, 3, v9
  v_lshl_add_u32 v11, v12, 8, v11
  s_lshl_b32 s45, {s(S_KH)}, 7
  v_xor_b32 v11, s45, v11""")
        for sl in range(2):
            g(f"  v_xor_b32 v12, {sl*64}, v11\n  v_add_u32 {v(WA(0,sl))}, 24576, v12\n  v_add_u32 {v(WA(1,sl))}, {24576 + BB[2]}, v12")
        g(f"""  v_lshrrev_b32 v11, 1, v4
  v_xor_b32 v11, v11, v3
  v_lshlrev_b32 v11, 4, v11
  v_lshl_add_u32 v11, v4, 7, v11
  s_mul_i32 s44, {s(S_RG)}, {96*128}
  v_add_u32 v11, s44, v11
  v_mov_b32 {v(XA(0,0))}, v11
  v_xor_b32 {v(XA(0,1))}, 64, v11
  v_add_u32 {v(XA(1,0))}, {BB[2]}, {v(XA(0,0))}
  v_add_u32 {v(XA(1,1))}, {BB[2]}, {v(XA(0,1))}""")
        g(f"""  s_lshl_b32 s44, {s(S_KH)}, 13
  v_xor_b32 v8, v3, v4
  v_lshlrev_b32 v8, 4, v8
  v_lshl_add_u32 v8, v4, 8, v8
  v_xor_b32 v8, s45, v8
  v_add_u32 v8, s44, v8""")
        for ks in range(4):
            g(f"  v_xor_b32 {v(VKA+ks)}, {ks*64}, v8")
            g(f"  v_add_u32 {v(VKA+4+ks)}, 0x10000, {v(VKA+ks)}")
        g(f"""  v_and_b32 v11, 1, v3
  v_lshl_add_u32 v11, v11, 2, v9
  v_lshlrev_b32 v11, 1, v11
  v_lshrrev_b32 v12, 1, v10
  v_xor_b32 v11, v11, v12
  v_lshlrev_b32 v11, 4, v11
  v_and_b32 v12, 1, v10
  v_lshl_add_u32 v11, v12, 3, v11
  v_lshl_add_u32 v12, v3, 2, v9
  v_lshl_add_u32 v11, v12, 8, v11
  v_add_u32 v11, s44, v11
  v_add_u32 v11, 16384, v11""")
        for dt in range(8):
            g(f"  v_xor_b32 {v(VVA+dt)}, {dt*32}, v11")
            g(f"  v_add_u32 {v(VVA+8+dt)}, 0x10000, {v(VVA+dt)}")
        g(f"""  v_cmp_eq_u32 vcc, 0, v10
  v_mov_b32 v12, 0x3f803f80
  v_cndmask_b32 {v(VONE)}, 0, v12, vcc
  v_mov_b32 {v(VONE+1)}, {v(VONE)}
  v_mov_b32 {v(VONE+2)}, {v(VONE)}
  v_mov_b32 {v(VONE+3)}, {v(VONE)}""")
        sc = f2u(math.log2(math.e) / math.sqrt(128.0))
        g(f"""  v_lshlrev_b32 {v(VL16)}, 4, v2
  s_mul_i32 s44, s3, 12288
  s_add_u32 s44, s44, {WB}
  v_add_u32 {v(EXW)}, s44, {v(VL16)}
  s_xor_b32 s45, s3, 2
  s_mul_i32 s44, s45, 12288
  s_add_u32 s44, s44, {WB}
  v_add_u32 {v(EXR)}, s44, {v(VL16)}
  s_mov_b32 {s(S_SC)}, {hex(sc)}
  s_mov_b32 {s(S_SC+1)}, {hex(sc)}
  s_add_u32 {s(S_KOFF)}, {s(S_M0B)}, {4*16384}
  s_add_u32 {s(S_VOFF)}, {s(S_M0B)}, {3*16384}""")
    cfg["_setup"] = setup
    qproj(g)
    if fused:
        g(f"""  s_or_b32 s44, s3, {s(S_H)}
  s_or_b32 s44, s44, {s(S_PASS)}
  s_cmp_eq_u32 s44, 0
  s_cbranch_scc0 L_nordy
  s_lshl_b32 s44, {s(S_B)}, 4
  s_add_u32 s44, s44, 132
  v_mov_b32 {v(TKO)}, s44
  v_mov_b32 {v(TKD)}, 1
  s_mov_b64 exec, 1
  global_store_dword {v(TKO)}, {v(TKD)}, s[90:91] sc1
  s_mov_b64 exec, -1""")
        g.label("L_nordy")
    g.stamp(1)
    g.cstamp(5)
    g(f"  s_cmp_eq_u32 {s(S_PASS)}, 0\n  s_cbranch_scc0 L_maxpass")
    for ks in range(4):
        for kt in range(2):
            g("  " + kread(kt, ks, 3))
    for i in range(24): g(f"  v_mov_b32 {v(VL+i)}, 0")
    for i in range(8): g(f"  v_mov_b32 {v(P(1)+i)}, 0")
    g("  s_waitcnt lgkmcnt(0)")
    for ks in range(4):
        for qt in range(6):
            c = "0" if ks == 0 else v(NM(qt), 4)
            g(f"  {MF} {v(NM(qt),4)}, {a(KF(0,ks),4)}, {v(Q(qt,ks),4)}, {c}")
    g("  s_nop 7")
    def rowmax_finish():
        for qt in range(6): g(f"  v_mov_b32 {v(NM(qt)+1)}, {v(NM(qt))}")
        g("  s_nop 1")
        for qt in range(6): g(f"  v_permlane32_swap_b32 {v(NM(qt))}, {v(NM(qt)+1)}")
        g("  s_nop 1")
        for qt in range(6): g(f"  v_max_f32 {v(NM(qt))}, {v(NM(qt))}, {v(NM(qt)+1)}")
        for qt in range(6): g(f"  v_mov_b32 {v(NM(qt)+1)}, {v(NM(qt))}")
        g("  s_nop 1")
        for qt in range(6): g(f"  v_permlane16_swap_b32 {v(NM(qt))}, {v(NM(qt)+1)}")
        g("  s_nop 1")
        for qt in range(6): g(f"  v_max_f32 {v(NM(qt))}, {v(NM(qt))}, {v(NM(qt)+1)}")
        for qt in range(6):
            g(f"  v_sub_f32 {v(NM(qt))}, 0, {v(NM(qt))}")
        for qt in range(6):
            for r in range(1, 4): g(f"  v_mov_b32 {v(NM(qt)+r)}, {v(NM(qt))}")
    for qt in range(6):
        g(f"  v_max3_f32 {v(NM(qt))}, {v(NM(qt))}, {v(NM(qt)+1)}, {v(NM(qt)+2)}")
    for qt in range(6):
        g(f"  v_max_f32 {v(NM(qt))}, {v(NM(qt))}, {v(NM(qt)+3)}")
    rowmax_finish()
    g.label("L_join")
    g.tstamp(26)
    g("  s_nop 1")
    for m in qk_mfmas(0, 0): g("  " + m)
    g(f"  s_mov_b32 {s(S_CNT)}, 0")
    g.label("L_loop")
    if fused:
        tk = f"global_atomic_add {v(TKV)}, {v(TKO)}, {v(TKD)}, {s(S_FLP,2)} sc0" if fused >= 2 else "s_nop 0"
        cidx = "s2, 7" if fused >= 3 else f"{s(S_B)}, 7"
        g(f"""  s_sub_u32 s44, {s(S_TK)}, 4
  s_cmp_eq_u32 {s(S_CNT)}, s44
  s_cbranch_scc0 L_nordp
  v_lshrrev_b32 {v(TKO)}, 0, {v(VL16)}
  s_mov_b64 exec, 0xff
  global_load_dword {v(RDV)}, {v(TKO)}, s[90:91] offset:132 sc1
  s_mov_b64 exec, -1
L_nordp:
  s_cmp_eq_u32 {s(S_CNT)}, {s(S_TK)}
  s_cbranch_scc0 L_notk
  s_mov_b32 s45, {cfg.get("f_spin", 300000)}
  v_mov_b32 {v(TKO)}, {v(VL16)}
L_rdchk:
  s_mov_b64 exec, 0xff
  v_cmp_eq_u32 vcc, 0, {v(RDV)}
  s_cbranch_vccz L_rdok
  s_sleep 8
  global_load_dword {v(RDV)}, {v(TKO)}, s[90:91] offset:132 sc1
  s_waitcnt vmcnt(0)
  s_sub_u32 s45, s45, 1
  s_cmp_eq_u32 s45, 0
  s_cbranch_scc0 L_rdchk
L_rdok:
  s_and_b32 s44, {cidx}
  s_lshl_b32 s44, s44, 13
  s_add_u32 s44, s44, {31*256}
  s_mov_b64 exec, 1
  v_mov_b32 {v(TKO)}, s44
  v_mov_b32 {v(TKD)}, 1
  s_nop 0
  {tk}
  s_mov_b64 exec, -1""")
        g.label("L_notk")
    for t in range(4):
        npf = (0 if not cfg.get("pf") else (1 if cfg.get("pfs", 128) == 128 else 2))
        g(f"  s_waitcnt vmcnt({cfg.get('vm',16) + 3 * npf})")
        g("  s_barrier")
        if cfg.get("trace"):
            g("  s_memrealtime s[76:77]\n  s_memtime s[80:81]")
            g(f"  s_lshl_b32 s78, {s(S_CNT)}, 2\n  s_add_u32 s78, s78, {t}")
        for j in range(3):
            stage(g, t, j)
    g(f"  s_add_u32 {s(S_CNT)}, {s(S_CNT)}, 1\n  s_cmp_lt_u32 {s(S_CNT)}, 8\n  s_cbranch_scc1 L_loop")
    for m in pv_mfmas(2, 1): g("  " + m)
    g.stamp(2)
    g.cstamp(6)
    if VSUM[0]:
        if VSUM[0] == 2:
            for qt in range(6): g(f"  v_pk_add_f32 {v(L(qt),2)}, {v(L(qt),2)}, {v(L(qt)+2,2)}")
        for qt in range(6): g(f"  v_add_f32 {v(L(qt))}, {v(L(qt))}, {v(L(qt)+1)}")
        for sw in ("v_permlane32_swap_b32", "v_permlane16_swap_b32"):
            for qt in range(6): g(f"  v_mov_b32 {v(L(qt)+1)}, {v(L(qt))}")
            g("  s_nop 1")
            for qt in range(6): g(f"  {sw} {v(L(qt))}, {v(L(qt)+1)}")
            g("  s_nop 1")
            for qt in range(6): g(f"  v_add_f32 {v(L(qt))}, {v(L(qt))}, {v(L(qt)+1)}")
    g(f"""  v_lshrrev_b32 {v(VX)}, 2, {v(VL16)}
  s_mul_i32 s44, s3, 3072
  s_add_u32 s44, s44, {STATS}
  v_add_u32 {v(VX+1)}, s44, {v(VX)}
  s_xor_b32 s45, s3, 2
  s_mul_i32 s44, s45, 3072
  s_add_u32 s44, s44, {STATS}
  v_add_u32 {v(VX+2)}, s44, {v(VX)}
  s_nop 4""")
    for qt in range(6):
        g(f"  ds_write_b32 {v(VX+1)}, {v(NM(qt))} offset:{qt*512}")
        g(f"  ds_write_b32 {v(VX+1)}, {v(L(qt))} offset:{qt*512+256}")
    if fused >= 2:
        g(f"""  s_waitcnt vmcnt(0)
  s_cmp_eq_u32 {s(S_TK)}, 99
  s_cbranch_scc1 L_notkw
  v_readfirstlane_b32 s44, {v(TKV)}
  v_mov_b32 {v(TKO)}, {FLAGS + 16}
  s_nop 1
  v_mov_b32 {v(TKD)}, s44
  ds_write_b32 {v(TKO)}, {v(TKD)}""")
        g.label("L_notkw")
    g("  s_waitcnt vmcnt(0) lgkmcnt(0)\n  s_barrier")
    if fused >= 2:
        g(f"  v_mov_b32 {v(TKO)}, {FLAGS + 16}\n  ds_read_b32 {v(TKV)}, {v(TKO)}")
    for qt in range(6):
        g(f"  ds_read_b32 {v(S(0)+2*qt)}, {v(VX+2)} offset:{qt*512}")
        g(f"  ds_read_b32 {v(S(0)+2*qt+1)}, {v(VX+2)} offset:{qt*512+256}")
    if cfg.get("wol2"):
        R = cfg["wol2"]
        per_wave = R * 288
        g(f"""  s_mov_b32 {s(SWO)}, {s(S_WOP)}
  s_and_b32 {s(SWO+1)}, {s(S_WOP+1)}, 0xffff
  s_mov_b32 {s(SWO+2)}, {4096*1152}
  s_mov_b32 {s(SWO+3)}, 0x20000
  s_lshr_b32 s44, s2, 3
  s_mul_i32 s44, s44, {cfg.get("wol2s", R)*1152}
  s_mul_i32 s45, s3, {per_wave}
  s_add_u32 s44, s44, s45""")
        nl = (per_wave + 1023) // 1024
        for i in range(nl):
            off = min(1024*i, per_wave - 1024)
            if off >= 4096 and off % 4096 < 1024 and i % 4 == 0:
                g(f"  s_add_u32 s44, s44, 4096")
            g(f"  buffer_load_dwordx4 {v(VX+24,4)}, {v(VL16)}, {s(SWO,4)}, s44 offen offset:{1024*(i%4)}")
    elif cfg.get("wopf", 1):
        g(f"""  s_mov_b32 {s(SWO)}, {s(S_WOP)}
  s_and_b32 {s(SWO+1)}, {s(S_WOP+1)}, 0xffff
  s_mov_b32 {s(SWO+2)}, {4096*1152}
  s_mov_b32 {s(SWO+3)}, 0x20000
  s_mul_i32 s44, s2, 18432
  s_mul_i32 s45, s3, 4608
  s_add_u32 s44, s44, s45""")
        for i in range(5):
            g(f"  buffer_load_dwordx4 {v(VX+24,4)}, {v(VL16)}, {s(SWO,4)}, s44 offen offset:{min(1024*i, 3584)}")
    g(f"""  s_mul_i32 s44, s3, 24576
  v_add_u32 {v(VX+8)}, s44, {v(VL16)}
  s_xor_b32 s45, s3, 2
  s_mul_i32 s44, s45, 24576
  v_add_u32 {v(VX+9)}, s44, {v(VL16)}
  s_mul_i32 s44, {s(S_RG)}, 6
  s_mul_i32 s45, {s(S_B)}, 12
  s_add_u32 s44, s44, s45
  s_lshl_b32 s44, s44, 5
  s_add_u32 s44, s44, {s(S_H)}
  s_lshl_b32 {s(S_T2)}, s44, 12
  s_mov_b32 s24, s32
  s_and_b32 s25, s33, 0xffff
  s_mov_b32 s26, {8*12*128*1024}
  s_mov_b32 s27, 0x20000
  s_waitcnt lgkmcnt({12 if cfg.get("epi2") else 0})""")
    if fused >= 2:
        g(f"""  s_cmp_eq_u32 {s(S_PASS)}, 0
  s_cbranch_scc0 L_havetk
  v_readfirstlane_b32 {s(S_TILE)}, {v(TKV)}""")
        g.label("L_havetk")
        if fused >= 4: fused2_setup(g, 1 if cfg.get("epi2") else 0)
    elif fused:
        g(f"  s_mov_b32 {s(S_TILE)}, {s(S_H)}")
    LS = VX + 6
    if not cfg.get("epi2"):
        g(f"  v_add_f32 {v(LS)}, {v(L(0))}, {v(L(1))}")
        for qt in range(2, 6): g(f"  v_add_f32 {v(LS)}, {v(LS)}, {v(L(qt))}")
        for qt in range(6):
            nmo, nmp, lp = NM(qt), S(0) + 2 * qt, S(0) + 2 * qt + 1
            t, fo, fp = VX + 3, VX + 4, VX + 5
            go, gp = S(0) + 0, 0
            g(f"""  v_min_f32 {v(t)}, {v(nmo)}, {v(nmp)}
  v_sub_f32 {v(fo)}, {v(t)}, {v(nmo)}
  v_sub_f32 {v(fp)}, {v(t)}, {v(nmp)}
  v_exp_f32 {v(fo)}, {v(fo)}
  v_exp_f32 {v(fp)}, {v(fp)}
  s_nop 0
  v_mul_f32 {v(t)}, {v(L(qt))}, {v(fo)}
  v_fma_f32 {v(t)}, {v(lp)}, {v(fp)}, {v(t)}
  v_rcp_f32 {v(t)}, {v(t)}
  s_nop 0
  v_mul_f32 {v(NM(qt))}, {v(fo)}, {v(t)}
  v_mul_f32 {v(NM(qt)+2)}, {v(fp)}, {v(t)}""")
        for qt in range(6):
            go, gp = 96 + 4 * qt, 96 + 4 * qt + 2
            g(f"""  v_mov_b32 {v(go)}, {v(NM(qt))}
  v_mov_b32 {v(go+1)}, {v(NM(qt))}
  v_mov_b32 {v(gp)}, {v(NM(qt)+2)}
  v_mov_b32 {v(gp+1)}, {v(NM(qt)+2)}""")
    g(f"  s_cmp_eq_u32 {s(S_KH)}, 0\n  s_cbranch_scc0 L_ep1")
    epilogue_variant(g, 0)
    g("  s_branch L_ep_done")
    g.label("L_ep1")
    epilogue_variant(g, 1)
    g.label("L_ep_done")
    if cfg.get("epi2") and fused >= 4: fused2_setup(g, 2)
    CH = VX + 10
    g(f"""  v_add_f32 {v(CH)}, {v(CH)}, {v(CH+1)}
  v_sub_f32 {v(CH)}, {v(CH)}, {v(CH)}
  v_cmp_u_f32 vcc, {v(CH)}, {v(CH)}
  s_mov_b64 s[46:47], vcc
  v_mov_b32 {v(CH+1)}, {hex(f2u(LTHR))}
  v_cmp_nle_f32 vcc, {v(LS)}, {v(CH+1)}
  s_or_b64 s[46:47], s[46:47], vcc
  s_cmp_lg_u64 s[46:47], 0
  s_cselect_b32 s44, 1, 0
  s_lshl_b32 s45, s3, 2
  s_add_u32 s45, s45, {FLAGS}
  v_mov_b32 {v(CH)}, s44
  v_mov_b32 {v(CH+1)}, s45
  ds_write_b32 {v(CH+1)}, {v(CH)}
  s_waitcnt lgkmcnt(0)
  s_barrier
  v_mov_b32 {v(CH+1)}, {FLAGS}
  ds_read_b128 {v(VX+12,4)}, {v(CH+1)}
  s_waitcnt lgkmcnt(0)
  v_or3_b32 {v(CH)}, {v(VX+12)}, {v(VX+13)}, {v(VX+14)}
  v_or_b32 {v(CH)}, {v(CH)}, {v(VX+15)}
  s_nop 0
  v_readfirstlane_b32 s44, {v(CH)}
  s_xor_b32 s45, {s(S_PASS)}, 1
  s_and_b32 s44, s44, s45
  s_cmp_lg_u32 s44, 0
  s_cbranch_scc1 L_fallback""")
    if fused:
        g.stamp(4)
        (fused_outproj2 if fused >= 4 else fused_outproj)(g)
        g.label("L_fin")
        if cfg.get("stamps"):
            g(f"  v_mbcnt_lo_u32_b32 {v(VL16)}, -1, 0\n  v_mbcnt_hi_u32_b32 {v(VL16)}, -1, {v(VL16)}\n  v_lshlrev_b32 {v(VL16)}, 4, {v(VL16)}")
    g("  s_waitcnt vmcnt(0)")
    if cfg.get("dbgout"):
        g.stamp(7)
        g(f"""  s_add_u32 s30, s32, {hex(STAMP_OFF)}
  s_addc_u32 s31, s33, 0
  s_and_b32 s44, s2, 63
  s_cmp_eq_u32 s44, {cfg.get("dbgout")-1}
  s_cbranch_scc0 L_k1_end
  s_cmp_eq_u32 s3, 0
  s_cbranch_scc0 L_k1_end
  s_lshr_b32 s44, s2, 6
  s_lshl_b32 s44, s44, 4
  s_sub_u32 s62, s62, s60
  s_sub_u32 s64, s64, s60
  s_sub_u32 s74, s74, s60
  s_sub_u32 s72, s72, s70
  v_mov_b32 v20, s62
  v_mov_b32 v21, s64
  v_mov_b32 v22, s74
  v_mov_b32 v23, s72
  v_mov_b32 v24, s44
  v_cmp_eq_u32 vcc, 0, {v(VL16)}
  s_and_saveexec_b64 s[46:47], vcc
  s_waitcnt lgkmcnt(0)
  global_store_dwordx4 v24, v[20:23], s[30:31]
  v_mov_b32 v20, s60
  v_lshrrev_b32 v24, 2, v24
  global_store_dword v24, v20, s[30:31] offset:64
  s_waitcnt vmcnt(0)""")
    elif cfg.get("stamps"):
        g.stamp(7)
        g(f"""  s_add_u32 s30, s32, {hex(STAMP_OFF)}
  s_addc_u32 s31, s33, 0
  s_lshl_b32 s44, s2, 6
  s_add_u32 s30, s30, s44
  s_addc_u32 s31, s31, 0
  v_mov_b32 v24, 0
  s_cmp_eq_u32 s3, {cfg.get("stampwave", 0)}
  s_cbranch_scc0 L_k1_end
  v_cmp_eq_u32 vcc, 0, {v(VL16)}
  s_and_saveexec_b64 s[46:47], vcc
  s_cbranch_execz L_k1_end""")
        for i in (0, 1, 2, 3, 4, 5, 6, 7):
            g(f"  v_mov_b32 v20, {s(S_STAMP+2*i)}\n  v_mov_b32 v21, {s(S_STAMP+2*i+1)}\n  global_store_dwordx2 v24, v[20:21], s[30:31] offset:{8*i}\n  s_nop 1")
        g("  s_waitcnt vmcnt(0)")
        if cfg.get("trace") or cfg.get("qtrace"):
            g(f"""  s_mov_b64 exec, -1
  s_add_u32 s30, s32, {hex(STAMP_OFF - 0xc000)}
  s_addc_u32 s31, s33, 0
  s_lshl_b32 s44, s2, 7
  s_add_u32 s30, s30, s44
  s_addc_u32 s31, s31, 0
  v_lshrrev_b32 v24, 2, {v(VL16)}
  v_cmp_gt_u32 vcc, 128, v24
  s_and_saveexec_b64 s[46:47], vcc
  global_store_dword v24, v250, s[30:31]
  s_sub_u32 s30, s30, 0x8000
  s_subb_u32 s31, s31, 0
  global_store_dword v24, v251, s[30:31]
  s_waitcnt vmcnt(0)""")
    g.label("L_k1_end")
    g("  s_endpgm")
    g.label("L_fallback")
    g(f"""  s_waitcnt vmcnt(0) lgkmcnt(0)
  s_mov_b32 {s(S_PASS)}, 1
  s_mov_b32 {s(S_TK)}, 99
  s_barrier
  s_branch L_restart""")
    g.label("L_maxpass")
    for i in range(24): g(f"  v_mov_b32 {v(VL+i)}, 0")
    for i in range(8): g(f"  v_mov_b32 {v(P(1)+i)}, 0")
    for qt in range(6): g(f"  v_mov_b32 {v(NM(qt))}, 0xff800000")
    g(f"""  s_mov_b32 {s(S_CNT)}, 0
  s_mov_b32 {s(S_T1)}, {s(S_M0B)}
  s_waitcnt vmcnt(0) lgkmcnt(0)
  s_barrier""")
    g.label("L_mp_loop")
    g(f"  s_add_u32 m0, {s(S_M0B)}, {3*SLOT}\n  s_nop 0")
    for p in range(4):
        g(f"  buffer_load_dwordx4 {v(VKD+p)}, {s(SK,4)}, {s(S_T1)} offen offset:{1024*p} lds")
    g("  s_waitcnt vmcnt(0)\n  s_barrier")
    for ks in range(4):
        for kt in range(2):
            g("  " + kread(kt, ks, 3))
    g("  s_waitcnt lgkmcnt(0)\n  s_barrier")
    for j in range(3):
        for m in qk_mfmas(j, 0, czero=True): g("  " + m)
        g("  s_nop 7")
        for qi in range(2):
            qt = 2 * j + qi
            for kt in range(2):
                b = S(0, kt, qi)
                g(f"  v_max3_f32 {v(NM(qt))}, {v(NM(qt))}, {v(b)}, {v(b+1)}")
                g(f"  v_max3_f32 {v(NM(qt))}, {v(NM(qt))}, {v(b+2)}, {v(b+3)}")
        g("  s_nop 1")
    g(f"""  s_add_u32 {s(S_T1)}, {s(S_T1)}, 16384
  s_add_u32 {s(S_CNT)}, {s(S_CNT)}, 1
  s_cmp_lt_u32 {s(S_CNT)}, 32
  s_cbranch_scc1 L_mp_loop""")
    rowmax_finish()
    g(f"  s_add_u32 m0, {s(S_M0B)}, {3*SLOT}\n  s_nop 0")
    for p in range(4):
        g(f"  buffer_load_dwordx4 {v(VKD+p)}, {s(SK,4)}, {s(S_M0B)} offen offset:{1024*p} lds")
    g("  s_waitcnt vmcnt(0)\n  s_barrier")
    for ks in range(4):
        for kt in range(2):
            g("  " + kread(kt, ks, 3))
    g("  s_waitcnt lgkmcnt(0)\n  s_branch L_join")

def gen_k2(g):
    cfg = g.cfg
    NPF = cfg.get("k2_depth", 6)
    RING = 8
    g(f".globl {K2}\n.p2align 8\n.type {K2},@function\n{K2}:")
    g("  s_cmp_ge_u32 s2, 216\n  s_cbranch_scc1 L_k2_end")
    g("  s_load_dwordx4 s[4:7], s[0:1], 32\n  s_load_dwordx2 s[32:33], s[0:1], 56")
    if cfg.get("stamps"): g(f"  s_memrealtime {s(S_STAMP,2)}")
    g("""  v_lshrrev_b32 v1, 6, v0
  v_and_b32 v2, 63, v0
  s_and_b32 s34, s2, 7                 ; b
  v_readfirstlane_b32 s3, v1
  s_lshr_b32 s35, s2, 3                ; qp*9+nt
  s_mul_i32 s36, s35, 57
  s_lshr_b32 s36, s36, 9               ; qp
  s_mul_i32 s37, s36, 9
  s_sub_u32 s37, s35, s37              ; nt
  v_lshrrev_b32 v3, 4, v2
  v_and_b32 v4, 15, v2
  v_lshlrev_b32 v10, 4, v2""")
    g("""  v_lshrrev_b32 v7, 3, v2
  v_and_b32 v8, 7, v2
  v_lshrrev_b32 v9, 1, v7
  v_and_b32 v9, 3, v9
  v_lshlrev_b32 v9, 1, v9
  v_xor_b32 v8, v8, v9
  v_lshlrev_b32 v8, 4, v8
  v_mul_u32_u24 v7, 1152, v7
  v_add_u32 v11, v7, v8
  v_add_u32 v12, 8192, v11
  v_add_u32 v13, 16384, v11
  v_add_u32 v14, 24576, v11""")
    g("""  s_mul_i32 s44, s34, 12
  s_lshl_b32 s45, s36, 2
  s_add_u32 s44, s44, s45
  s_lshl_b32 s44, s44, 17
  s_lshl_b32 s45, s3, 15
  s_add_u32 s38, s44, s45""")
    if cfg.get("k2same") in (1, 2): g("  s_lshl_b32 s38, s3, 15")
    g(f"  s_mul_i32 s40, s3, {1024*1152}")
    g("  s_lshl_b32 s41, s3, 15")
    g("  s_waitcnt lgkmcnt(0)")
    g(f"""  s_lshl_b32 s44, s37, {7 if cfg.get("k2same") not in (1, 3) else 7}
  {"s_mov_b32 s44, 0" if cfg.get("k2same") in (1, 3) else ""}
  s_add_u32 s8, s4, s44
  s_addc_u32 s9, s5, 0
  s_and_b32 s9, s9, 0xffff
  s_sub_u32 s10, {4096*1152}, s44
  s_mov_b32 s11, 0x20000
  s_mov_b32 s12, s32
  s_and_b32 s13, s33, 0xffff
  s_mov_b32 s14, {8*12*128*1024}
  s_mov_b32 s15, 0x20000
  s_mov_b32 s16, s6
  s_and_b32 s17, s7, 0xffff
  s_mov_b32 s18, {8*192*1152}
  s_mov_b32 s19, 0x20000""")
    ACC = lambda mt, nt: 32 + (mt * 4 + nt) * 4
    NB = NPF + 1
    BF = lambda k, nt: 96 + ((k % NB) * 4 + nt) * 4
    AFB = 96 + NB * 16
    AF = lambda k, mt: AFB + ((k & 1) * 4 + mt) * 4
    assert AFB + 32 <= 256
    def issue(k):
        L_ = []
        L_.append(f"s_add_u32 m0, s41, {(k % RING)*4096}")
        L_.append(f"s_add_u32 s44, s40, {k*32*1152}")
        for p in range(4):
            L_.append(f"buffer_load_dwordx4 {v(11+p)}, s[8:11], s44 offen offset:{1024*p} lds")
        for nt in range(4):
            L_.append(f"s_add_u32 s45, s38, {nt*131072 + k*1024}")
            L_.append(f"buffer_load_dwordx4 {v(BF(k,nt),4)}, v10, s[12:15], s45 offen")
        return L_
    def areads(k):
        L_ = []
        for mt in range(4):
            for half in range(2):
                L_.append(f"ds_read_b64_tr_b16 {v(AF(k,mt)+2*half,2)}, {v(16+mt)} offset:{(k%RING)*4096 + half*2048}")
        return L_
    assert NPF + 1 <= RING
    for k in range(NPF):
        for ins in issue(k): g("  " + ins)
    g("""  v_lshrrev_b32 v7, 2, v4             ; r
  v_and_b32 v8, 3, v4                  ; c
  v_lshl_add_u32 v9, v3, 2, v7         ; row = 4g+r
  v_lshrrev_b32 v5, 1, v9
  v_and_b32 v5, 3, v5
  v_lshlrev_b32 v5, 1, v5
  v_lshrrev_b32 v6, 1, v8
  v_xor_b32 v5, v5, v6
  v_lshlrev_b32 v5, 4, v5
  v_and_b32 v6, 1, v8
  v_lshl_add_u32 v5, v6, 3, v5
  v_lshl_add_u32 v5, v9, 7, v5
  v_add_u32 v16, s41, v5
  v_xor_b32 v17, 32, v16
  v_xor_b32 v18, 64, v16
  v_xor_b32 v19, 96, v16""")
    g(f"  s_waitcnt vmcnt({8*(NPF-1)})")
    g.stamp(1); g.cstamp(5)
    for ins in areads(0): g("  " + ins)
    NK = 32
    for k in range(NK):
        nxt = issue(k + NPF) if k + NPF < NK else []
        outstanding_after = min(NK, k + NPF + 1) - (k + 2)
        mf = []
        for mt in range(4):
            for nt in range(4):
                c = "0" if k == 0 else v(ACC(mt, nt), 4)
                mf.append(f"{MF} {v(ACC(mt,nt),4)}, {v(AF(k,mt),4)}, {v(BF(k,nt),4)}, {c}")
        g("  s_waitcnt lgkmcnt(0)")
        spread(g, mf[:8], nxt)
        if k + 1 < NK:
            g(f"  s_waitcnt vmcnt({8*max(0,outstanding_after)})")
            spread(g, mf[8:], areads(k + 1))
        else:
            spread(g, mf[8:], [])
    g.stamp(2); g.cstamp(6)
    PITCH = 272
    g("  s_nop 7\n  s_barrier")
    g(f"""  v_mul_u32_u24 v7, {PITCH}, v4
  v_lshl_add_u32 v7, v3, 4, v7
  s_mul_i32 s45, s3, {64*PITCH}
  v_add_u32 v7, s45, v7""")
    for mt in range(4):
        for nt in range(4):
            g(f"  ds_write_b128 v7, {v(ACC(mt,nt),4)} offset:{nt*16*PITCH + mt*64}")
    g("  s_waitcnt lgkmcnt(0)\n  s_barrier")
    g(f"""  v_lshrrev_b32 v7, 3, v0
  v_and_b32 v8, 7, v0
  v_mul_u32_u24 v9, {PITCH}, v7
  v_lshl_add_u32 v9, v8, 5, v9""")
    for i in range(2):
        for w in range(4):
            for hq in range(2):
                g(f"  ds_read_b128 {v(96 + ((i*4+w)*2+hq)*4, 4)}, v9 offset:{i*32*PITCH + w*64*PITCH + hq*16}")
    g(f"""  s_mul_i32 s45, s34, 192
  s_lshl_b32 s46, s36, 6
  s_add_u32 s45, s45, s46
  s_mul_i32 s45, s45, 1152
  s_lshl_b32 s46, s37, 7
  s_add_u32 s45, s45, s46
  v_mul_u32_u24 v7, 1152, v7
  v_lshl_add_u32 v7, v8, 4, v7""")
    for i in range(2):
        g(f"  s_waitcnt lgkmcnt({8 if i == 0 else 0})")
        b0 = 96 + i * 32
        for w in range(1, 4):
            for e in range(0, 8, 2):
                g(f"  v_pk_add_f32 {v(b0+e,2)}, {v(b0+e,2)}, {v(b0+w*8+e,2)}")
        for e in range(4):
            g(f"  v_cvt_pk_bf16_f32 {v(b0+e)}, {v(b0+2*e)}, {v(b0+2*e+1)}")
        g(f"  s_add_u32 s46, s45, {i*32*1152}")
        g(f"  buffer_store_dwordx4 {v(b0,4)}, v7, s[16:19], s46 offen")
    g("  s_waitcnt vmcnt(0)")
    if cfg.get("dbgout"):
        g.stamp(7)
        g(f"""  s_cmp_eq_u32 s2, 0
  s_cbranch_scc0 L_k2_end
  s_cmp_eq_u32 s3, 0
  s_cbranch_scc0 L_k2_end
  s_load_dwordx2 s[28:29], s[0:1], 48
  s_add_u32 s30, s32, {hex(STAMP_OFF)}
  s_addc_u32 s31, s33, 0
  v_lshlrev_b32 v24, 2, v2
  global_load_dword v20, v24, s[30:31]
  global_load_dword v21, v24, s[30:31] offset:64
  s_waitcnt vmcnt(0) lgkmcnt(0)
  v_readfirstlane_b32 s44, v21
  s_nop 3
  s_sub_u32 s60, s60, s44
  s_sub_u32 s74, s74, s44
  v_writelane_b32 v20, s60, 12
  v_writelane_b32 v20, s74, 13
  v_cmp_gt_u32 vcc, 64, v24
  s_and_saveexec_b64 s[46:47], vcc
  global_store_dword v24, v20, s[28:29]
  s_waitcnt vmcnt(0)""")
    if cfg.get("stamps") and not cfg.get("dbgout"):
        g.stamp(7)
        g(f"""  s_add_u32 s30, s32, {hex(STAMP_OFF - 0x4000)}
  s_addc_u32 s31, s33, 0
  s_lshl_b32 s44, s2, 6
  s_add_u32 s30, s30, s44
  s_addc_u32 s31, s31, 0
  v_mov_b32 v24, 0
  v_cmp_eq_u32 vcc, 0, v0
  s_and_saveexec_b64 s[46:47], vcc
  s_cbranch_execz L_k2_end""")
        for i in (0, 1, 2, 5, 6, 7):
            g(f"  v_mov_b32 v20, {s(S_STAMP+2*i)}\n  v_mov_b32 v21, {s(S_STAMP+2*i+1)}\n  global_store_dwordx2 v24, v[20:21], s[30:31] offset:{8*i}\n  s_nop 1")
        g("  s_waitcnt vmcnt(0)")
    g.label("L_k2_end")
    g("  s_endpgm")

def generate(cfg):
    global K1
    VSUM[0] = cfg.get("vsum", 0)
    g = Gen(cfg)
    g(HEADER.rstrip())
    if cfg.get("fused"):
        K1 = "standalone__mha_block_cached__near_ridge_kernel"
        g("; @launch grid=(256,1,1) block=(256,1,1) lds=163840")
    elif cfg.get("only") != 2:
        g(f"; @launch kernel={K1} grid=(256,1,1) block=(256,1,1) lds=163840")
    if cfg.get("only") != 1 and not cfg.get("fused"):
        g(f"; @launch kernel={K2} grid=(216,1,1) block=(256,1,1) lds=131072")
    g('.amdgcn_target "amdgcn-amd-amdhsa--gfx950"\n.text')
    gen_k1(g)
    if not cfg.get("fused"): gen_k2(g)
    g('.section .rodata,"a"\n.p2align 6')
    g(kernel_desc(K1, 512, 102, 256))
    if not cfg.get("fused"):
        g(".p2align 6")
        g(kernel_desc(K2, 256, 96, 256))
    return g.text()

if __name__ == "__main__":
    import json
    out = sys.argv[1]
    cfg = json.loads(sys.argv[2]) if len(sys.argv) > 2 else {}
    open(out, "w").write(generate(cfg))
```
